```python
import torch

def _softmax(x, axis=-1):
    return torch.softmax(x, dim=axis)
def _gelu(x):
    return torch.nn.functional.gelu(x, approximate="tanh")
def _silu(x):
    return torch.nn.functional.silu(x)
def _sigmoid(x):
    return torch.sigmoid(x)
def _layernorm(x, axis=-1, eps=1e-5):
    m = x.mean(dim=axis, keepdim=True)
    v = x.var(dim=axis, keepdim=True, unbiased=False)
    return (x - m) / torch.sqrt(v + eps)
def _scatter_add(tgt, idx, src, axis=0):
    return tgt.clone().index_add_(axis, idx, src)
def _segment_sum(src, seg, n):
    out = torch.zeros((n,) + src.shape[1:], dtype=src.dtype)
    return out.index_add_(0, seg, src)
def _pad(x, pw):
    flat = tuple(v for pair in reversed(pw) for v in pair)
    return torch.nn.functional.pad(x, flat)

kernel_name = 'gated_mix__softmax_full_mha__moe_arch_mod__prompt'

def setup_inputs():

    _w = (lambda a: (lambda t: t.to(torch.bfloat16) if t.is_floating_point() else t)(torch.as_tensor(a)))
    def _A_setup():
        B, S, D = 1, 2048, 1024
        return {
            "x": _w((lambda *s: torch.randn(*s, dtype=torch.bfloat16) * 0.05)(B, S, D)),
            "wqkv": _w((lambda *s: torch.randn(*s, dtype=torch.bfloat16) * 0.8)(D, 3 * D)),
            "wo": _w((lambda *s: torch.randn(*s, dtype=torch.bfloat16) * 0.1)(D, D)),
        }
    _A_in = _A_setup()

    def _B_setup():
        B, S, D, F, C = 1, 2048, 1024, 3584, 1
        return {
            "x": _w((lambda *s: torch.randn(*s, dtype=torch.bfloat16) * 0.05)(B, S, D)),
            "w_r": _w((lambda *s: torch.randn(*s, dtype=torch.bfloat16) * 3.2)(D)),
            "w_gate": _w((lambda *s: torch.randn(*s, dtype=torch.bfloat16) * 0.2)(D, F)),
            "w_up": _w((lambda *s: torch.randn(*s, dtype=torch.bfloat16) * 0.2)(D, F)),
            "w_down": _w((lambda *s: torch.randn(*s, dtype=torch.bfloat16) * 0.2)(F, D)),
        }
    _B_in = _B_setup()

    return {
        "A_x": _A_in["x"],
        "A_wqkv": _A_in["wqkv"],
        "A_wo": _A_in["wo"],
        "B_x": _B_in["x"],
        "B_w_r": _B_in["w_r"],
        "B_w_gate": _B_in["w_gate"],
        "B_w_up": _B_in["w_up"],
        "B_w_down": _B_in["w_down"],
        "gate_w": _w((lambda *s: torch.randn(*s, dtype=torch.bfloat16) * 0.05)(1024) * 16.0),
    }

def reference(A_x, A_wqkv, A_wo, B_x, B_w_r, B_w_gate, B_w_up, B_w_down, gate_w):
    def _A_ref(x, wqkv, wo):
        B, S, D = x.shape
        H = 32; Dh = D // H
        qkv = (lambda x, *d: x.permute(*d))((x @ wqkv).reshape(B, S, 3, H, Dh), 2, 0, 3, 1, 4)
        q, k, v = qkv[0], qkv[1], qkv[2]
        scale = Dh ** -0.5
        scores = torch.einsum("bhqd,bhkd->bhqk", q, k) * scale
        p = _softmax(scores, axis=-1)
        o = torch.einsum("bhqk,bhkd->bhqd", p, v)
        return (lambda x, *d: x.permute(*d))(o, 0, 2, 1, 3).reshape(B, S, D) @ wo

    def _B_ref(x, w_r, w_gate, w_up, w_down):
        B, S, D = x.shape
        C = 1
        r = x @ w_r
        idx = torch.argsort(-r, axis=-1)[:, :C]
        idx_e = (lambda x, n, axis: torch.repeat_interleave(x, n, dim=axis))(idx.reshape(B, C, 1), D, axis=2)
        x_sel = (lambda x, i, axis: torch.take_along_dim(x, i, dim=axis))(x, idx_e, axis=1)
        g = _silu(x_sel @ w_gate)
        u = x_sel @ w_up
        y = (g * u) @ w_down
        r_sel = _sigmoid((lambda x, i, axis: torch.take_along_dim(x, i, dim=axis))(r, idx, axis=1))
        y = y * r_sel.reshape(B, C, 1)
        b_off = (torch.arange(B) * S).reshape(B, 1)
        flat_idx = (idx + b_off).reshape(B * C)
        zero = (x * 0.0).reshape(B * S, D)
        upd = _scatter_add(zero, flat_idx, y.reshape(B * C, D), axis=0)
        return x + upd.reshape(B, S, D)

    x = A_x
    g = _sigmoid((x * gate_w).sum(-1, keepdims=True))
    a = _A_ref(x, A_wqkv, A_wo)
    b = _B_ref(x, B_w_r, B_w_gate, B_w_up, B_w_down)
    return g * a + (1 - g) * b
```

```python
import re

REG_RE = re.compile(r'^(-|\|)?(abs\()?([vas])(\d+)\)?\|?$')
RNG_RE = re.compile(r'^(-)?([vas])\[(\d+):(\d+)\]$')

def parse_regs(tok):
    tok = tok.strip()
    m = RNG_RE.match(tok)
    if m:
        return [(m.group(2), i) for i in range(int(m.group(3)), int(m.group(4)) + 1)]
    m = REG_RE.match(tok)
    if m:
        return [(m.group(3), int(m.group(4)))]
    if tok == 'vcc':
        return [('s', 106), ('s', 107)]
    if tok == 'vcc_lo':
        return [('s', 106)]
    if tok == 'vcc_hi':
        return [('s', 107)]
    if tok == 'exec':
        return [('s', 126), ('s', 127)]
    if tok == 'exec_lo':
        return [('s', 126)]
    if tok == 'exec_hi':
        return [('s', 127)]
    if tok == 'm0':
        return [('s', 124)]
    return []

def split_ops(rest):
    out, depth, cur = [], 0, ''
    for ch in rest:
        if ch in '[(':
            depth += 1
        if ch in '])':
            depth -= 1
        if ch == ',' and depth == 0:
            out.append(cur.strip()); cur = ''
        else:
            cur += ch
    if cur.strip():
        out.append(cur.strip())
    return out

TRANS = ('v_exp_f32', 'v_log_f32', 'v_rcp_f32', 'v_rsq_f32', 'v_sqrt_f32', 'v_sin_f32', 'v_cos_f32',
         'v_exp_f16', 'v_rcp_iflag_f32')

class Ins:
    def __init__(self, text):
        self.text = text
        t = text.split(';')[0].strip()
        self.label = t.endswith(':')
        self.directive = t.startswith('.')
        self.empty = (t == '')
        self.op = ''
        self.dst, self.src = [], []
        self.A, self.B, self.C = [], [], []
        self.kind = 'other'
        if self.label or self.directive or self.empty:
            self.kind = 'none'
            return
        parts = t.split(None, 1)
        op = parts[0]
        self.op = op
        rest = parts[1] if len(parts) > 1 else ''
        ops = split_ops(rest)
        mods = ''
        if ops:
            l = ops[-1].split(None, 1)
            ops[-1] = l[0]
            mods = l[1] if len(l) > 1 else ''
        self.mods = mods
        self.ops = ops
        R = [parse_regs(o) for o in ops]
        base = re.sub(r'_(e32|e64|sdwa|dpp)$', '', op)
        self.base = base
        if op.startswith('v_mfma') or op.startswith('v_smfmac'):
            self.kind = 'mfma'
            self.dst = R[0]; self.A = R[1]; self.B = R[2]
            if op.startswith('v_smfmac'):
                self.C = R[0]; self.src = R[0] + R[1] + R[2] + R[3]; self.A = R[1] + R[3]
            else:
                self.C = R[3]; self.src = R[1] + R[2] + R[3]
            self.passes = 8 if '32x32' in op else (4 if '16x16' in op else 2)
            if op.startswith('v_smfmac'):
                self.passes = 8
        elif op.startswith('v_'):
            self.kind = 'valu'
            self.trans = base in TRANS
            self.dpp = ('dpp' in op) or ('row_' in mods) or ('quad_perm' in mods) or ('wave_' in mods)
            if base.startswith('v_cmp'):
                self.dst = R[0]; self.src = sum(R[1:], [])
                if base.startswith('v_cmpx'):
                    self.dst = self.dst + parse_regs('exec')
            elif base.startswith('v_permlane') and 'swap' in base:
                self.dst = R[0] + R[1]; self.src = R[0] + R[1]
            elif base in ('v_add_co_u32', 'v_sub_co_u32', 'v_subrev_co_u32', 'v_addc_co_u32', 'v_subb_co_u32',
                          'v_div_scale_f32', 'v_mad_u64_u32'):
                self.dst = R[0] + R[1]; self.src = sum(R[2:], [])
            elif base in ('v_fmac_f32', 'v_dot2c_f32_bf16', 'v_writelane_b32', 'v_pk_fmac_f16'):
                self.dst = R[0]; self.src = sum(R, [])
            elif base == 'v_nop':
                pass
            else:
                self.dst = R[0]; self.src = sum(R[1:], [])
                if 'UNUSED_PRESERVE' in mods or self.dpp:
                    self.src = self.src + R[0]
                if base == 'v_cndmask_b32' and len(ops) == 3:
                    self.src = self.src + parse_regs('vcc')
        elif op.startswith('ds_'):
            self.kind = 'ds'
            if op.startswith('ds_read') or op.startswith('ds_bpermute') or op.startswith('ds_permute') or op.startswith('ds_swizzle') or '_rtn' in op:
                self.dst = R[0]; self.src = sum(R[1:], [])
            else:
                self.src = sum(R, [])
        elif op.startswith('buffer_') or op.startswith('global_'):
            self.kind = 'vmem'
            self.lds = (' lds' in (' ' + mods)) or ('load_lds' in op)
            self.store = ('store' in op) or ('atomic' in op)
            self.data = []
            if op in ('buffer_inv', 'buffer_wbl2'):
                self.kind = 'cache'
            elif op.startswith('buffer_'):
                if self.lds:
                    self.src = sum(R, []) + parse_regs('m0')
                elif 'load' in op:
                    self.dst = R[0]; self.src = sum(R[1:], [])
                    if 'd16' in op: self.src += R[0]
                else:
                    self.data = R[0]; self.src = sum(R, [])
                    if 'atomic' in op and 'sc0' in mods:
                        self.dst = R[0][:len(R[0])]
            else:
                if self.lds:
                    self.src = sum(R, []) + parse_regs('m0')
                elif 'load' in op:
                    self.dst = R[0]; self.src = sum(R[1:], [])
                    if 'd16' in op: self.src += R[0]
                elif 'atomic' in op and 'sc0' in mods:
                    self.dst = R[0]; self.data = R[2]; self.src = sum(R[1:], [])
                else:
                    self.data = R[1]; self.src = sum(R, [])
        elif op.startswith('s_'):
            self.kind = 'salu'
            if op.startswith('s_load') or op.startswith('s_buffer_load') or op.startswith('s_memtime') or op.startswith('s_memrealtime'):
                self.kind = 'smem'
                self.dst = R[0]; self.src = sum(R[1:], [])
            elif op.startswith('s_cmp') or op.startswith('s_bitcmp'):
                self.src = sum(R, [])
            elif op in ('s_nop', 's_waitcnt', 's_barrier', 's_endpgm', 's_branch', 's_sleep', 's_setprio') or op.startswith('s_cbranch'):
                pass
            elif 'saveexec' in op:
                self.dst = R[0] + parse_regs('exec'); self.src = sum(R[1:], []) + parse_regs('exec')
            else:
                self.dst = R[0] if R else []; self.src = sum(R[1:], [])
    def states(self):
        if self.kind == 'none':
            return 0
        if self.op == 's_nop':
            return int(self.ops[0], 0) + 1
        return 1

def isv(r): return r[0] in 'va'
def iss(r): return r[0] == 's'

def lint(seq, name=''):
    probs = []
    n = len(seq)
    for j, c in enumerate(seq):
        if c.kind == 'none':
            continue
        dist = 0
        for i in range(j - 1, -1, -1):
            p = seq[i]
            if p.kind == 'none':
                continue
            if dist >= 20:
                break
            need = 0; why = ''
            pd = set(p.dst); cs = set(c.src); cd = set(c.dst)
            if p.kind == 'valu':
                pv = {r for r in pd if isv(r)}; ps = {r for r in pd if iss(r)}
                if c.kind == 'mfma' and pv & cs: need, why = 2, 'VALU->MFMA'
                if c.kind == 'valu':
                    if p.trans and not c.trans and pv & cs: need, why = max(need, 1), 'trans->VALU'
                    if c.base in ('v_readfirstlane_b32', 'v_readlane_b32') and pv & cs: need, why = max(need, 1), 'VALU->readlane'
                    if c.base.startswith('v_permlane') and pv & cs: need, why = max(need, 2), 'VALU->permlane'
                    if c.dpp and pv & cs: need, why = max(need, 2), 'VALU->DPP'
                    if ps & cs:
                        if c.base in ('v_readlane_b32', 'v_writelane_b32'): need, why = max(need, 4), 'VALU sgpr->lane sel'
                        else: need, why = max(need, 2), 'VALU sgpr->VALU'
                    if ('sdwa' in p.op or 'op_sel' in p.mods) and not p.op.startswith('v_pk') and not p.op.startswith('v_dot') and pv & (cs | cd):
                        need, why = max(need, 1), 'sdwa/opsel->VALU'
                if c.kind == 'vmem' and ps & cs: need, why = max(need, 5), 'VALU sgpr->VMEM'
                ex = set(parse_regs('exec'))
                if ps & ex:
                    if c.kind == 'mfma': need, why = max(need, 4), 'VALU exec->MFMA'
                    if c.kind == 'valu' and (c.dpp): need, why = max(need, 5), 'VALU exec->DPP'
                    if c.kind == 'valu' and (c.base.startswith('v_readlane') or c.base.startswith('v_readfirst') or c.base.startswith('v_permlane')): need, why = max(need, 4), 'exec->lane'
            if p.kind == 'mfma':
                big = {2: 5, 4: 8, 8: 12, 16: 20}[p.passes]
                ovl = {2: 4, 4: 6, 8: 10, 16: 18}[p.passes]
                war = {2: 1, 4: 3, 8: 7, 16: 15}[p.passes]
                if c.kind == 'mfma':
                    if pd & (set(c.A) | set(c.B)): need, why = max(need, big), 'MFMA D->A/B'
                    if pd & set(c.C):
                        if not (c.C == p.dst and c.passes == p.passes): need, why = max(need, ovl), 'MFMA D->C overlap'
                    elif pd & cd:
                        need, why = max(need, ovl), 'MFMA D WAW'
                elif c.kind in ('valu', 'vmem', 'ds'):
                    if pd & (cs | cd): need, why = max(need, big), 'MFMA D->VALU/mem'
                    if c.kind == 'valu' and set(p.C) & cd: need, why = max(need, war), 'MFMA C WAR'
            if p.kind == 'salu' and ('s', 124) in pd and c.kind == 'vmem' and getattr(c, 'lds', False):
                need, why = max(need, 1), 'm0->ldsdma'
            if p.kind == 'vmem' and p.store and len(p.data) >= 3 and set(p.data) & cd:
                need, why = max(need, 2 if c.kind == 'valu' else 1), 'store data WAR'
            if need > dist:
                probs.append(f'{name}: {why}: need {need} have {dist}:\n    [{i}] {p.text.strip()}\n    [{j}] {c.text.strip()}')
            dist += p.states()
    return probs

class Asm:
    def __init__(self):
        self.lines = []
        self.ds_q = []
        self.vm_q = []
        self.auto = True
        self.vm_total = 0
    def raw(self, t):
        self.lines.append(t)
    def __call__(self, t, tag=None):
        for l in t.split('\n'):
            l = l.strip()
            if not l:
                continue
            self._one(l, tag)
    def _one(self, l, tag):
        ins = Ins(l)
        if ins.kind == 'none':
            self.lines.append(l if ins.label or ins.directive else '    ' + l)
            return
        if self.auto:
            self._auto_wait(ins)
        if ins.op == 's_waitcnt':
            m = re.search(r'vmcnt\((\d+)\)', l)
            if m:
                k = int(m.group(1)); self.vm_q = self.vm_q[len(self.vm_q) - k:] if k < len(self.vm_q) else self.vm_q
                if k == 0: self.vm_q = []
            m = re.search(r'lgkmcnt\((\d+)\)', l)
            if m:
                k = int(m.group(1))
                if k == 0: self.ds_q = []
                elif k < len(self.ds_q):
                    assert not any(x[0] == 'smem' for x in self.ds_q), 'counted lgkmcnt with smem outstanding'
                    self.ds_q = self.ds_q[len(self.ds_q) - k:]
        self.lines.append('    ' + l)
        if ins.kind == 'ds':
            self.ds_q.append(('ds', set(ins.dst), tag))
        elif ins.kind == 'smem':
            self.ds_q.append(('smem', set(ins.dst), tag))
        elif ins.kind == 'vmem':
            self.vm_q.append((tag, set(ins.dst)))
            self.vm_total += 1
    def _auto_wait(self, ins):
        touched = set(ins.src) | set(ins.dst)
        if not touched:
            return
        w = []
        last = -1
        for i, e in enumerate(self.ds_q):
            if e[1] & touched: last = i
        if last >= 0:
            if any(x[0] == 'smem' for x in self.ds_q):
                k = 0
            else:
                k = len(self.ds_q) - 1 - last
            assert k <= 15
            w.append(f'lgkmcnt({k})')
            self.ds_q = self.ds_q[len(self.ds_q) - k:] if k else []
        last = -1
        for i, e in enumerate(self.vm_q):
            if e[1] & touched: last = i
        if last >= 0:
            k = len(self.vm_q) - 1 - last
            assert k <= 63
            w.append(f'vmcnt({k})')
            self.vm_q = self.vm_q[len(self.vm_q) - k:] if k else []
        if w:
            self.lines.append('    s_waitcnt ' + ' '.join(w))
    def wait_vm_tag(self, tag):
        last = -1
        for i, e in enumerate(self.vm_q):
            if e[0] == tag: last = i
        if last >= 0:
            k = len(self.vm_q) - 1 - last
            assert k <= 63, k
            self(f's_waitcnt vmcnt({k})')
    def wait_ds_all(self):
        if self.ds_q:
            self('s_waitcnt lgkmcnt(0)')
    def reset_q(self):
        self.ds_q = []; self.vm_q = []
    def text(self):
        return '\n'.join(self.lines) + '\n'
    def lint(self, name=''):
        return lint([Ins(l) for l in self.lines], name)
```

```python
from asmlib import *

NAME = "gated_mix__softmax_full_mha__moe_arch_mod__prompt"
KA_X, KA_WQKV, KA_WO, KA_BX, KA_WR, KA_WG, KA_WU, KA_WD, KA_GW, KA_OUT, KA_DBG, KA_WS = [8*i for i in range(12)]
WS_KV = 0
WS_Q = 8 << 20
WS_O = 12 << 20
WS_MISC = 16 << 20
WS_SIZE = 0x10000000
QSCALE = 0.17677669529663687 * 1.4426950408889634

import struct
def f2u(f):
    return struct.unpack('<I', struct.pack('<f', f))[0]

def kd(name, vgpr=256, sgpr=102, accum=None):
    accum = accum or ((vgpr + 3) // 4 * 4)
    return f""".section .rodata,"a"
.p2align 6
.amdhsa_kernel {name}
  .amdhsa_next_free_vgpr {vgpr}
  .amdhsa_next_free_sgpr {sgpr}
  .amdhsa_accum_offset {accum}
  .amdhsa_group_segment_fixed_size 0
  .amdhsa_kernarg_size 96
  .amdhsa_user_sgpr_count 2
  .amdhsa_user_sgpr_kernarg_segment_ptr 1
  .amdhsa_system_sgpr_workgroup_id_x 1
.end_amdhsa_kernel
.text
"""

def head(name):
    return f""".globl {name}
.p2align 8
.type {name},@function
{name}:
"""

def srd(a, d, base, nbytes):
    a(f"s_mov_b32 s{d}, s{base}")
    a(f"s_and_b32 s{d+1}, s{base+1}, 0xffff")
    a(f"s_mov_b32 s{d+2}, {nbytes:#x}")
    a(f"s_mov_b32 s{d+3}, 0x20000")

def vr(b, n):
    return f"v[{b}:{b+n-1}]" if n > 1 else f"v{b}"

WS_G = WS_MISC
WS_RK = WS_MISC + 0x2000
WS_FLAG = WS_MISC + 0x3000
WS_HP = WS_MISC + 0x10000
WS_YP = WS_MISC + 0x50000
LOG2E = 1.4426950408889634

def dpp_sum(a, regs):
    for mod in ("row_shr:1", "row_shr:2", "row_shr:4", "row_shr:8", "row_bcast:15 row_mask:0xa", "row_bcast:31 row_mask:0xc"):
        if len(regs) < 3:
            a(f"s_nop {2 - len(regs)}")
        for r in regs:
            a(f"v_add_f32_dpp v{r}, v{r}, v{r} {mod} bound_ctrl:0" if "bcast" not in mod else f"v_add_f32_dpp v{r}, v{r}, v{r} {mod}")

def dpp_umax(a, r):
    for mod in ("row_shr:1", "row_shr:2", "row_shr:4", "row_shr:8", "row_bcast:15 row_mask:0xa", "row_bcast:31 row_mask:0xc"):
        a("s_nop 1")
        a(f"v_max_u32_dpp v{r}, v{r}, v{r} {mod} bound_ctrl:0" if "bcast" not in mod else f"v_max_u32_dpp v{r}, v{r}, v{r} {mod}")

def round_bf16(a, r):
    a(f"v_cvt_pk_bf16_f32 v{r}, v{r}, v{r}")
    a(f"v_and_b32 v{r}, 0xffff0000, v{r}")

def sigmoid(a, r):
    a(f"v_mul_f32 v{r}, {f2u(-LOG2E):#x}, v{r}")
    a(f"v_exp_f32 v{r}, v{r}")
    a("s_nop 0")
    a(f"v_add_f32 v{r}, 1.0, v{r}")
    a(f"v_rcp_f32 v{r}, v{r}")
    a("s_nop 0")

def argmax_sweep(a, srd, vt, s_idx, s_key):
    a(f"v_lshlrev_b32 v{vt+8}, 5, v0")
    a(f"s_mov_b32 s{s_idx}, {WS_RK:#x}")
    a(f"buffer_load_dwordx4 v[{vt}:{vt+3}], v{vt+8}, s[{srd}:{srd+3}], s{s_idx} offen sc1")
    a(f"buffer_load_dwordx4 v[{vt+4}:{vt+7}], v{vt+8}, s[{srd}:{srd+3}], s{s_idx} offen offset:16 sc1")
    a(f"v_max_u32 v{vt}, v{vt}, v{vt+2}")
    a(f"v_max3_u32 v{vt}, v{vt}, v{vt+4}, v{vt+6}")
    dpp_umax(a, vt)
    a("s_nop 0")
    a(f"v_readlane_b32 s{s_key}, v{vt}, 63")
    a("s_nop 3")
    a(f"s_and_b32 s{s_idx}, s{s_key}, 0xffff")
    a(f"s_sub_u32 s{s_idx}, 2047, s{s_idx}")

def key_to_r(a, s_key, s_r, s_t):
    a(f"s_and_b32 s{s_r}, s{s_key}, 0xffff0000")
    a(f"s_xor_b32 s{s_t}, s{s_r}, 0xffff0000")
    a(f"s_bitcmp1_b32 s{s_key}, 31")
    a(f"s_xor_b32 s{s_r}, s{s_r}, 0x80000000")
    a(f"s_bitcmp1_b32 s{s_key}, 31")
    a(f"s_cselect_b32 s{s_r}, s{s_r}, s{s_t}")
```

```python
from common import *

Q0, Q1, SEL, L, NEGM, S, O, P, K, V = 8, 12, 16, 20, 32, [48, 64], 80, 96, 104, 112
LTHR = 0x5f800000

def mf32(d, a_, b_, c):
    cs = c if isinstance(c, str) else f"v[{c}:{c+15}]"
    return f"v_mfma_f32_32x32x16_bf16 v[{d}:{d+15}], v[{a_}:{a_+3}], v[{b_}:{b_+3}], {cs}"
def mf16(d, a_, b_, c):
    cs = c if isinstance(c, str) else f"v[{c}:{c+3}]"
    return f"v_mfma_f32_16x16x32_bf16 v[{d}:{d+3}], v[{a_}:{a_+3}], v[{b_}:{b_+3}], {cs}"

def tile_body(t, last, kread, vread, first=False, sched=0):
    s = S[t & 1]; sn = S[(t + 1) & 1]
    e = lambda i: f"v_exp_f32 v{s+i}, v{s+i}"
    c = lambda i: f"v_cvt_pk_bf16_f32 v{P+i}, v{s+2*i}, v{s+2*i+1}"
    qk0 = [] if last else [mf32(sn, K, Q0, NEGM)]
    qk1 = [] if last else [mf32(sn, K+4, Q1, sn)]
    pv0 = [mf32(O, V, P, "0" if first else O)]
    pv1 = [mf32(O, V+4, P+4, O)]
    l0 = [mf16(L, SEL, P, "0" if first else L)]
    l1 = [mf16(L, SEL, P+4, L)]
    if sched == 0:
        X = (qk0 + [e(0), e(1), e(2), e(3)] + qk1 + kread + [c(0), e(4), e(5), c(1), e(6), e(7), c(2), e(8), c(3), e(9), e(10)] + pv0 +
             [e(11), c(4), e(12), e(13)] + l0 + [c(5), e(14), e(15), c(6), "s_nop 0", c(7), "s_nop 1"] + pv1 + vread + ["s_nop 3"] + l1)
    elif sched == 1:
        X = (qk0 + [e(0), e(1), e(2), e(3)] + qk1 + kread + [c(0), e(4), e(5), c(1), e(6), e(7), c(2), e(8), c(3), e(9), e(10)] + pv0 +
             [e(11), c(4), e(12), e(13)] + l0 + [c(5), e(14), e(15), c(6), "s_nop 0", c(7), "s_nop 1"] + l1 + ["s_nop 0"] + pv1 + vread)
    return X

def tile_rot(t, rd, prio=None, onewait=True, nt=64, extra=None):
    s = S[t & 1]; sn = S[(t + 1) & 1]
    e = lambda i: f"v_exp_f32 v{s+i}, v{s+i}"
    c = lambda i: f"v_cvt_pk_bf16_f32 v{P+i}, v{s+2*i}, v{s+2*i+1}"
    first = (t == 0); last = (t == nt - 1)
    c7p = [] if first else [f"v_cvt_pk_bf16_f32 v{P+7}, v{sn+14}, v{sn+15}"]
    pv1p = [] if first else [mf32(O, V+4, P+4, O)]
    l1p = [] if first else [mf16(L, SEL, P+4, L)]
    qk0 = [] if last else [mf32(sn, K, Q0, NEGM)]
    qk1 = [] if last else [mf32(sn, K+4, Q1, sn)]
    pv0 = [mf32(O, V, P, "0" if first else O)]
    l0 = [mf16(L, SEL, P, "0" if first else L)]
    v1r = [] if first else [rd(V+4, t, 3)]
    kr = [rd(K, t+2, 0), rd(K+4, t+2, 1)] if t + 2 < nt else []
    v0r = [rd(V, t+1, 2)] if t + 1 < nt else []
    pr = [f"s_setprio {prio}"] if prio is not None else []
    w = ["s_waitcnt lgkmcnt(0)"] if onewait else []
    ex = extra or {}
    x = lambda i: ex.get(i, [])
    X = (pr + [e(0)] + c7p + [e(1), e(2)] + w + pv1p + v1r + [e(3), c(0), e(4), e(5)] + l1p + x(0) + [c(1), e(6)] + qk0 +
         [e(7), c(2), e(8), c(3)] + qk1 + kr + [e(9), e(10), e(11)] + pv0 + v0r + [c(4), e(12), e(13), c(5)] + l0 + x(1) +
         [e(14), e(15), c(6)] + x(2))
    if last:
        X += ["s_nop 0", f"v_cvt_pk_bf16_f32 v{P+7}, v{s+14}, v{s+15}", "s_nop 1", mf32(O, V+4, P+4, O), mf16(L, SEL, P+4, L)]
    return X

def sel_setup(a, tmp):
    a(f"v_lshrrev_b32 v{tmp}, 2, v0")
    a(f"v_lshrrev_b32 v{tmp+1}, 4, v0")
    a(f"v_xor_b32 v{tmp}, v{tmp}, v{tmp+1}")
    a(f"v_and_b32 v{tmp}, 1, v{tmp}")
    a(f"v_cmp_eq_u32 vcc, 0, v{tmp}")
    a(f"v_mov_b32 v{tmp+1}, 0x3f803f80")
    a("s_nop 0")
    a(f"v_cndmask_b32 v{SEL}, 0, v{tmp+1}, vcc")
    for i in range(1, 4):
        a(f"v_mov_b32 v{SEL+i}, v{SEL}")

def rowmax(a, s, dst, tmp):
    a(f"v_max3_f32 v{dst}, v{s}, v{s+1}, v{s+2}")
    for i in range(3, 15, 2):
        a(f"v_max3_f32 v{dst}, v{dst}, v{s+i}, v{s+i+1}")
    a(f"v_max_f32 v{dst}, v{dst}, v{s+15}")

def crosshalf_max(a, dst, tmp):
    a(f"v_mov_b32 v{tmp}, v{dst}")
    a("s_nop 1")
    a(f"v_permlane32_swap_b32 v{dst}, v{tmp}")
    a(f"v_max_f32 v{dst}, v{dst}, v{tmp}")

def fallback(a, name, s_kvbase, srd, vl16):
    auto = a.auto
    a.reset_q()
    a(f"v_mov_b32 v4, 0xff800000")
    a("s_mov_b32 s96, 0")
    a(f"{name}_fb1:")
    a("s_lshr_b32 s97, s96, 2")
    a("s_lshl_b32 s97, s97, 15")
    a("s_and_b32 s98, s96, 3")
    a("s_lshl_b32 s98, s98, 12")
    a("s_add_u32 s97, s97, s98")
    a(f"s_add_u32 s97, s97, s{s_kvbase}")
    a(f"buffer_load_dwordx4 v[{K}:{K+3}], v{vl16}, s[{srd}:{srd+3}], s97 offen sc1")
    a(f"buffer_load_dwordx4 v[{K+4}:{K+7}], v{vl16}, s[{srd}:{srd+3}], s97 offen offset:1024 sc1")
    a("s_waitcnt vmcnt(0)")
    a(mf32(S[0], K, Q0, "0"))
    a(mf32(S[0], K+4, Q1, S[0]))
    a("s_nop 15")
    rowmax(a, S[0], 5, 6)
    a("v_max_f32 v4, v4, v5")
    a("s_add_u32 s96, s96, 1")
    a("s_cmp_lt_u32 s96, 64")
    a(f"s_cbranch_scc1 {name}_fb1")
    crosshalf_max(a, 4, 5)
    for i in range(16):
        a(f"v_sub_f32 v{NEGM+i}, 0, v4")
        a(f"v_mov_b32 v{O+i}, 0")
    for i in range(4):
        a(f"v_mov_b32 v{L+i}, 0")
    a("s_mov_b32 s96, 0")
    a(f"{name}_fb2:")
    a("s_lshr_b32 s97, s96, 2")
    a("s_lshl_b32 s97, s97, 15")
    a("s_and_b32 s98, s96, 3")
    a("s_lshl_b32 s98, s98, 12")
    a("s_add_u32 s97, s97, s98")
    a(f"s_add_u32 s97, s97, s{s_kvbase}")
    a(f"buffer_load_dwordx4 v[{K}:{K+3}], v{vl16}, s[{srd}:{srd+3}], s97 offen sc1")
    a(f"buffer_load_dwordx4 v[{K+4}:{K+7}], v{vl16}, s[{srd}:{srd+3}], s97 offen offset:1024 sc1")
    a(f"buffer_load_dwordx4 v[{V}:{V+3}], v{vl16}, s[{srd}:{srd+3}], s97 offen offset:2048 sc1")
    a(f"buffer_load_dwordx4 v[{V+4}:{V+7}], v{vl16}, s[{srd}:{srd+3}], s97 offen offset:3072 sc1")
    a("s_waitcnt vmcnt(0)")
    a(mf32(S[0], K, Q0, NEGM))
    a(mf32(S[0], K+4, Q1, S[0]))
    a("s_nop 15")
    for i in range(16):
        a(f"v_exp_f32 v{S[0]+i}, v{S[0]+i}")
    a("s_nop 0")
    for i in range(8):
        a(f"v_cvt_pk_bf16_f32 v{P+i}, v{S[0]+2*i}, v{S[0]+2*i+1}")
    a("s_nop 1")
    a(mf32(O, V, P, O))
    a(mf32(O, V+4, P+4, O))
    a(mf16(L, SEL, P, L))
    a(mf16(L, SEL, P+4, L))
    a("s_add_u32 s96, s96, 1")
    a("s_cmp_lt_u32 s96, 64")
    a(f"s_cbranch_scc1 {name}_fb2")
    a("s_nop 15")

def gen_attn(name="attn_kernel", timing=False, sched=0, force_fb=False, dmapos=1, strip=()):
    a = Asm()
    a.raw(head(name))
    NST = [0]
    def stamp(real=False):
        if not timing: return
        i = NST[0]; NST[0] += 1
        a(f"{'s_memrealtime' if real else 's_memtime'} s[{64+2*i}:{65+2*i}]")
    a("s_cmp_ge_u32 s2, 256")
    a(f"s_cbranch_scc1 {name}_end")
    stamp(True); stamp()
    a(f"s_load_dwordx2 s[28:29], s[0:1], {KA_WS}")
    a("v_lshrrev_b32 v1, 6, v0")
    a("v_and_b32 v0, 63, v0")
    a("v_readfirstlane_b32 s22, v1")
    a("s_and_b32 s3, s2, 7")
    a("s_lshr_b32 s4, s2, 3")
    a("s_and_b32 s21, s4, 15")
    a("s_lshr_b32 s4, s4, 4")
    a("s_lshl_b32 s20, s3, 1")
    a("s_add_u32 s20, s20, s4")
    a("s_bfe_u32 s24, s22, 0x10001")
    a("s_and_b32 s23, s22, 1")
    a("s_lshl_b32 s23, s23, 1")
    a("s_lshr_b32 s4, s22, 2")
    a("s_add_u32 s23, s23, s4")
    a("v_lshlrev_b32 v1, 4, v0")
    a("s_lshl_b32 s25, s22, 12")
    a("v_add_u32 v2, s25, v1")
    a("s_lshl_b32 s26, s20, 19")
    a("s_waitcnt lgkmcnt(0)")
    srd(a, 16, 28, WS_SIZE)
    def dma(i):
        a(f"s_add_u32 s4, s21, {i}")
        a("s_and_b32 s4, s4, 15")
        a("s_lshl_b32 s4, s4, 15")
        a("s_add_u32 s4, s4, s26")
        a(f"s_add_u32 m0, s25, {(i & 3) * 32768}")
        a("s_nop 0")
        for j in range(4):
            a(f"buffer_load_dwordx4 v2, s[16:19], s4 offen offset:{j*1024} lds", tag=('kv', i))
    a("s_lshl_b32 s5, s20, 4")
    a("s_add_u32 s5, s5, s21")
    a("s_lshl_b32 s5, s5, 14")
    a("s_lshl_b32 s6, s24, 13")
    a("s_add_u32 s5, s5, s6")
    a("s_lshl_b32 s6, s23, 11")
    a("s_add_u32 s5, s5, s6")
    a(f"s_add_u32 s5, s5, {WS_Q}")
    a(f"buffer_load_dwordx4 v[{Q0}:{Q0+3}], v1, s[16:19], s5 offen")
    a(f"buffer_load_dwordx4 v[{Q1}:{Q1+3}], v1, s[16:19], s5 offen offset:1024")
    for i in range(3):
        dma(i)
    sel_setup(a, 4)
    a("s_lshl_b32 s6, s24, 14")
    a("v_add_u32 v3, s6, v1")
    a("v_add_u32 v7, 65536, v3")
    def rd(dst, t, part):
        c, kt = divmod(t, 4)
        slot = c & 3
        return f"ds_read_b128 v[{dst}:{dst+3}], v{3 if slot < 2 else 7} offset:{(slot & 1)*32768 + kt*4096 + part*1024}"
    a.wait_vm_tag(('kv', 0))
    a("s_barrier")
    stamp()
    a.wait_ds_all()
    for x in (rd(K, 0, 0), rd(K+4, 0, 1), rd(V, 0, 2), rd(V+4, 0, 3)):
        a(x)
    a(mf32(S[0], K, Q0, "0"))
    a(mf32(S[0], K+4, Q1, S[0]))
    a("s_nop 15")
    rowmax(a, S[0], 4, 5)
    crosshalf_max(a, 4, 5)
    if force_fb:
        a("v_add_f32 v4, 0xc3480000, v4")
    for i in range(16):
        a(f"v_sub_f32 v{NEGM+i}, 0, v4")
    a("s_nop 1")
    a(mf32(S[0], K, Q0, NEGM))
    a(mf32(S[0], K+4, Q1, S[0]))
    a(rd(K, 1, 0)); a(rd(K+4, 1, 1))
    a("s_nop 9")
    for t in range(64):
        c, kt = divmod(t, 4)
        extra = {}
        if kt == 2 and c < 15:
            a.wait_vm_tag(('kv', c + 1))
            if "s_barrier" not in strip: a("s_barrier")
            if c + 3 <= 15 and sched < 5:
                dma(c + 3)
        if sched >= 5:
            ci = (t - 2) // 4 + 3
            j = (t - 2) % 4
            if t >= 2 and ci <= 15:
                extra[dmapos] = [(f"buffer_load_dwordx4 v2, s[16:19], s4 offen offset:{j*1024} lds", ('kv', ci))]
            ci2 = (t - 1) // 4 + 3
            if t >= 1 and (t - 1) % 4 == 0 and ci2 <= 15:
                extra[2] = extra.get(2, []) + [f"s_add_u32 s4, s21, {ci2}", "s_and_b32 s4, s4, 15", "s_lshl_b32 s4, s4, 15", "s_add_u32 s4, s4, s26",
                            f"s_add_u32 m0, s25, {(ci2 & 3) * 32768}"]
        if sched < 2:
            kread = [rd(K, t+2, 0), rd(K+4, t+2, 1)] if t + 2 < 64 else []
            vread = [rd(V, t+1, 2), rd(V+4, t+1, 3)] if t + 1 < 64 else []
            X = tile_body(t, t == 63, kread, vread, first=(t == 0), sched=sched)
        else:
            prio = None
            if sched in (3, 6): prio = 3 - ((t - 2) % 4)
            X = tile_rot(t, rd, prio=prio, onewait=(sched != 4), extra=extra)
        for x in X:
            txt = x[0] if isinstance(x, tuple) else x
            if any(txt.startswith(p) for p in strip): continue
            if isinstance(x, tuple): a(x[0], tag=x[1])
            else: a(x)
    stamp(); stamp(True)
    a.wait_ds_all()
    a("s_nop 15")
    a(f"s_mov_b32 s4, {LTHR:#x}")
    a(f"v_cmp_nlt_f32 vcc, v{L}, s4")
    a("s_nop 1")
    a("s_cmp_eq_u64 vcc, 0")
    a(f"s_cbranch_scc1 {name}_fin")
    a("s_lshl_b32 s6, s24, 14")
    a("s_add_u32 s27, s26, s6")
    fallback(a, name, 27, 16, 1)
    a(f"{name}_fin:")
    a(f"v_rcp_f32 v4, v{L}")
    a("s_lshl_b32 s5, s21, 2")
    a("s_add_u32 s5, s5, s23")
    a("s_lshl_b32 s5, s5, 16")
    a("s_lshl_b32 s6, s20, 1")
    a("s_add_u32 s6, s6, s24")
    a("s_lshl_b32 s6, s6, 11")
    a("s_add_u32 s5, s5, s6")
    a(f"s_add_u32 s5, s5, {WS_O}")
    for i in range(16):
        a(f"v_mul_f32 v{O+i}, v{O+i}, v4")
    for i in range(8):
        a(f"v_cvt_pk_bf16_f32 v{P+i}, v{O+2*i}, v{O+2*i+1}")
    a(f"buffer_store_dwordx4 v[{P}:{P+3}], v1, s[16:19], s5 offen")
    a(f"buffer_store_dwordx4 v[{P+4}:{P+7}], v1, s[16:19], s5 offen offset:1024")
    if timing:
        a("s_waitcnt vmcnt(0)")
        stamp(); stamp(True)
        a("s_waitcnt vmcnt(0) lgkmcnt(0)")
        a("s_lshl_b32 s4, s2, 10")
        a("s_lshl_b32 s5, s22, 7")
        a("s_add_u32 s4, s4, s5")
        a(f"s_add_u32 s4, s4, {WS_MISC + (2<<20)}")
        a("v_mov_b32 v5, 0")
        for i in range(NST[0]):
            a(f"v_mov_b32 v6, s{64+2*i}")
            a(f"buffer_store_dword v6, v5, s[16:19], s4 offen offset:{4*i}")
    a(f"{name}_end:")
    a("s_endpgm")
    return a

if __name__ == "__main__":
    import sys
    from k_qkv import gen_qkv
    for tag, kw in (("6", dict(sched=6)), ("nobar", dict(sched=6, strip=("s_barrier",))), ("nods", dict(sched=6, strip=("ds_read",))),
       ("nol", dict(sched=6, strip=("v_mfma_f32_16x16",))), ("nodma", dict(sched=6, strip=("buffer_load",))),
       ("noall", dict(sched=6, strip=("ds_read", "buffer_load", "s_barrier", "s_waitcnt"))), ("noall5", dict(sched=5, strip=("ds_read", "buffer_load", "s_barrier", "s_waitcnt"))),
       ("nomfma", dict(sched=6, strip=("v_mfma",)))):
        q = gen_qkv(timing=False)
        a = gen_attn(timing=True, **kw)
        if tag == "6":
            for p in a.lint("attn"): print(p)
        txt = ("; @launch kernel=qkv_kernel grid=(256,1,1) block=(512,1,1) lds=163840\n"
               "; @launch kernel=attn_kernel grid=(256,1,1) block=(512,1,1) lds=163840\n"
               ".amdgcn_target \"amdgcn-amd-amdhsa--gfx950\"\n.text\n" + q.text() + kd("qkv_kernel") + a.text() + kd("attn_kernel"))
        open(f"attn{tag}.s", "w").write(txt)
```

```python
from common import *

STG = 40960
def gen_qkv(name="qkv_kernel", timing=False):
    a = Asm()
    a.raw(head(name))
    a("s_cmp_ge_u32 s2, 256")
    a(f"s_cbranch_scc1 {name}_end")
    NST = [0]
    def stamp(real=False):
        if not timing: return
        i = NST[0]; NST[0] += 1
        a(f"{'s_memrealtime' if real else 's_memtime'} s[{36+2*i}:{37+2*i}]")
    def dump():
        if not timing: return
        a("s_waitcnt vmcnt(0) lgkmcnt(0)")
        a("s_lshl_b32 s4, s2, 10")
        a("s_lshl_b32 s5, s22, 7")
        a("s_add_u32 s4, s4, s5")
        a(f"s_add_u32 s4, s4, {WS_MISC + (1<<20)}")
        a("v_mov_b32 v5, 0")
        for i in range(NST[0]):
            a(f"v_mov_b32 v6, s{36+2*i}")
            a(f"buffer_store_dword v6, v5, s[16:19], s4 offen offset:{4*i}")
    stamp(True); stamp()
    a(f"s_load_dwordx4 s[24:27], s[0:1], {KA_X}")
    a(f"s_load_dwordx2 s[28:29], s[0:1], {KA_WS}")
    a("v_lshrrev_b32 v1, 6, v0")
    a("v_and_b32 v0, 63, v0")
    a("v_readfirstlane_b32 s22, v1")
    a("s_and_b32 s3, s2, 7")
    a("s_lshr_b32 s4, s2, 3")
    a("s_and_b32 s21, s4, 15")
    a("s_lshr_b32 s4, s4, 4")
    a("s_lshl_b32 s20, s3, 1")
    a("s_add_u32 s20, s20, s4")
    a("s_waitcnt lgkmcnt(0)")
    stamp()
    srd(a, 8, 24, 2048*2048)
    srd(a, 12, 26, 1024*6144)
    srd(a, 16, 28, WS_SIZE)
    a("s_cmp_lt_u32 s22, 4")
    a(f"s_cbranch_scc1 {name}_cons")
    a("s_sub_u32 s23, s22, 4")
    a("v_lshrrev_b32 v2, 3, v0")
    a("v_lshrrev_b32 v3, 4, v0")
    a("v_and_b32 v4, 7, v0")
    a("v_xor_b32 v5, v4, v3")
    a("v_xor_b32 v6, 4, v5")
    a("s_lshl_b32 s4, s21, 7")
    a("s_lshl_b32 s5, s23, 5")
    a("s_add_u32 s4, s4, s5")
    a("v_add_u32 v7, s4, v2")
    a("v_lshlrev_b32 v7, 11, v7")
    a("v_lshl_add_u32 v5, v5, 4, v7")
    a("v_lshl_add_u32 v6, v6, 4, v7")
    VX = 10
    for j in range(4):
        a(f"v_add_u32 v{VX+j}, {j*(16384-1024)}, v{5 + (j & 1)}")
    a("v_and_b32 v3, 1, v3")
    a("v_lshlrev_b32 v3, 2, v3")
    a("v_xor_b32 v4, v4, v3")
    a("v_mul_u32_u24 v2, 6144, v2")
    a("v_lshl_add_u32 v2, v4, 4, v2")
    a("s_lshl_b32 s4, s20, 7")
    a("v_add_u32 v2, s4, v2")
    a("s_mul_i32 s5, s23, 6")
    VW = 14
    for u in range(6):
        imm = (u % 4) * 1024 if u < 4 else (u - 4) * 1024
        a(f"s_add_u32 s6, s5, {u}")
        a("s_lshr_b32 s7, s6, 3")
        a("s_and_b32 s6, s6, 7")
        a("s_mul_i32 s6, s6, 49152")
        a("s_lshl_b32 s7, s7, 11")
        a("s_add_u32 s6, s6, s7")
        if imm:
            a(f"s_sub_u32 s6, s6, {imm}")
        a(f"v_add_u32 v{VW+u}, s6, v2")
    a("s_lshl_b32 s30, s23, 12")
    a("s_mul_i32 s31, s23, 6144")
    a("s_add_u32 s31, s31, 16384")
    def issue(stage):
        buf = stage % 4
        a(f"s_add_u32 m0, s30, {buf*STG}")
        a(f"s_mov_b32 s32, {stage*128}")
        for j in range(4):
            a(f"buffer_load_dwordx4 v{VX+j}, s[8:11], s32 offen offset:{j*1024} lds", tag=stage)
        a(f"s_add_u32 m0, s31, {buf*STG}")
        a(f"s_mov_b32 s33, {stage*64*6144}")
        for u in range(4):
            a(f"buffer_load_dwordx4 v{VW+u}, s[12:15], s33 offen offset:{u*1024} lds", tag=stage)
        a(f"s_add_u32 m0, s31, {buf*STG+4096}")
        a("s_nop 0")
        for u in range(4, 6):
            a(f"buffer_load_dwordx4 v{VW+u}, s[12:15], s33 offen offset:{(u-4)*1024} lds", tag=stage)
    save = NST[0]
    stamp()
    for s in range(4):
        issue(s)
        stamp()
    for n in range(16):
        a.wait_vm_tag(n)
        stamp()
        a("s_barrier")
        if n >= 1 and n + 3 <= 15:
            issue(n + 3)
    stamp(); stamp(True)
    dump()
    NST[0] = save
    a(f"s_branch {name}_end")
    a.reset_q()
    a(f"{name}_cons:")
    stamp()
    a("s_and_b32 s23, s22, 1")
    a("s_lshr_b32 s24, s22, 1")
    a("v_and_b32 v1, 31, v0")
    a("v_lshrrev_b32 v2, 5, v0")
    a("v_bfe_u32 v3, v0, 1, 3")
    a("s_lshl_b32 s4, s23, 13")
    a("v_lshl_add_u32 v4, v1, 7, s4")
    XA = 8
    for ks in range(4):
        a(f"v_or_b32 v5, {2*ks}, v2")
        a("v_xor_b32 v5, v5, v3")
        a(f"v_lshl_add_u32 v{XA+ks}, v5, 4, v4")
        a(f"v_add_u32 v{XA+4+ks}, {2*STG}, v{XA+ks}")
    WA = 16
    a("v_bfe_u32 v3, v0, 2, 2")
    a("v_lshl_add_u32 v4, v2, 3, v3")
    a("v_lshlrev_b32 v4, 7, v4")
    a("v_bfe_u32 v5, v0, 4, 1")
    a("v_lshlrev_b32 v5, 1, v5")
    a("v_bfe_u32 v6, v0, 1, 1")
    a("v_or_b32 v5, v5, v6")
    a("s_lshl_b32 s4, s24, 2")
    a("v_or_b32 v5, s4, v5")
    a("v_lshrrev_b32 v3, 1, v3")
    a("v_lshlrev_b32 v3, 2, v3")
    a("v_xor_b32 v5, v5, v3")
    a("v_lshl_add_u32 v4, v5, 4, v4")
    a("v_and_b32 v5, 1, v0")
    a("v_lshl_add_u32 v4, v5, 3, v4")
    a(f"v_add_u32 v{WA}, 16384, v4")
    a(f"v_add_u32 v{WA+1}, {16384+2*STG}, v4")
    FR = [20, 40]
    ACC = 64
    def acc(tt, sg): return ACC + (tt*3 + sg) * 16
    def reads(n, ks, fs):
        buf = n % 4
        bo = (buf & 1) * STG
        xa = XA + (buf >> 1) * 4 + ks
        wa = WA + (buf >> 1)
        f = FR[fs]
        L = []
        def w(sg, u):
            return f"ds_read_b64_tr_b16 v[{f+8+4*sg+2*u}:{f+9+4*sg+2*u}], v{wa} offset:{bo + sg*8192 + ks*2048 + u*512}"
        def x(tt):
            return f"ds_read_b128 v[{f+4*tt}:{f+4*tt+3}], v{xa} offset:{bo + tt*4096}"
        return [x(0), w(0,0), w(0,1), w(1,0), w(1,1), w(2,0), w(2,1), x(1)]
    def mfmas(fs, first):
        f = FR[fs]
        L = []
        for tt in range(2):
            for sg in range(3):
                X = f"v[{f+4*tt}:{f+4*tt+3}]"
                W = f"v[{f+8+4*sg}:{f+11+4*sg}]"
                d = acc(tt, sg)
                D = f"v[{d}:{d+15}]"
                C = "0" if first else D
                if sg < 2:
                    L.append(f"v_mfma_f32_32x32x16_bf16 {D}, {W}, {X}, {C}")
                else:
                    L.append(f"v_mfma_f32_32x32x16_bf16 {D}, {X}, {W}, {C}")
        return L
    a("s_barrier")
    stamp(); stamp(True)
    a.wait_ds_all()
    for r in reads(0, 0, 0):
        a(r)
    step = 0
    for n in range(16):
        for ks in range(4):
            fs = step & 1
            M = mfmas(fs, step == 0)
            if ks < 3:
                R = reads(n, ks + 1, fs ^ 1)
            elif n < 15:
                R = reads(n + 1, 0, fs ^ 1)
            else:
                R = []
            if ks == 3 and n < 15:
                stamp()
                a.wait_ds_all()
                a("s_barrier")
            for i, m in enumerate(M):
                a(m)
                for r in R[2*i:2*i+2]:
                    a(r)
            step += 1
    stamp(); stamp(True)
    a.wait_ds_all()
    a("s_nop 7")
    a("s_nop 7")
    a(f"s_mov_b32 s4, {f2u(QSCALE):#x}")
    a("s_mov_b32 s5, s4")
    a("s_lshl_b32 s6, s20, 4")
    a("s_add_u32 s6, s6, s21")
    a("s_lshl_b32 s7, s6, 15")
    a("s_lshl_b32 s25, s24, 14")
    a("s_add_u32 s7, s7, s25")
    a("s_lshl_b32 s25, s23, 13")
    a("s_add_u32 s7, s7, s25")
    a("s_lshl_b32 s26, s6, 14")
    a(f"s_add_u32 s26, s26, {WS_Q}")
    a("s_lshl_b32 s25, s24, 13")
    a("s_add_u32 s26, s26, s25")
    a("s_lshl_b32 s25, s23, 12")
    a("s_add_u32 s26, s26, s25")
    a("v_lshlrev_b32 v1, 4, v0")
    a("v_add_u32 v2, 4096, v1")
    T = 20
    for tt in range(2):
        for sg in range(3):
            d = acc(tt, sg)
            t = T + ((tt*3+sg) % 4) * 8
            if sg == 0:
                for i in range(8):
                    a(f"v_pk_mul_f32 v[{d+2*i}:{d+2*i+1}], v[{d+2*i}:{d+2*i+1}], s[4:5]")
            for i in range(8):
                a(f"v_cvt_pk_bf16_f32 v{t+i}, v{d+2*i}, v{d+2*i+1}")
            for st in range(2):
                if sg == 0:
                    a(f"buffer_store_dwordx4 v[{t+4*st}:{t+4*st+3}], v1, s[16:19], s26 offen offset:{tt*2048 + st*1024}")
                else:
                    a(f"buffer_store_dwordx4 v[{t+4*st}:{t+4*st+3}], v{1+tt}, s[16:19], s7 offen offset:{(sg-1)*2048 + st*1024}")
    stamp()
    if timing: a("s_waitcnt vmcnt(0)")
    stamp(); stamp(True)
    dump()
    a(f"{name}_end:")
    a("s_endpgm")
    return a

if __name__ == "__main__":
    a = gen_qkv(timing=True)
    for p in a.lint("qkv"): print(p)
    txt = "; @launch kernel=qkv_kernel grid=(256,1,1) block=(512,1,1) lds=163840\n.amdgcn_target \"amdgcn-amd-amdhsa--gfx950\"\n.text\n" + a.text() + kd("qkv_kernel")
    open("qkv.s", "w").write(txt)
```

```python
from common import *
import k_attn
from k_attn import mf32, mf16, rowmax, crosshalf_max, Q0, Q1, SEL, L, NEGM, S, O, P, K, V, LTHR

KN = NAME + "_kernel"
STG = 40960
WS_EPOCH = WS_MISC
WS_RK = WS_MISC + 0x1000
WS_G = WS_MISC + 0x4000
WS_FKV = WS_MISC + 0x8000
WS_XC = WS_MISC + 0x9000
WS_FO = WS_MISC + 0x200000
WS_HP = WS_MISC + 0x10000
WS_YP = WS_MISC + 0x90000
WS_WT = WS_MISC + 0x600000
WS_FW = WS_MISC + 0xD000
WS_IDX = WS_MISC + 0x800
WS_DUMP = WS_MISC + 0xC000
WS_TS = WS_MISC + (4 << 20)
KB = 1024
RING = [64*KB, 128*KB, 0, 32*KB]
QX = 32*KB
SCR = 96*KB
SCR_IDX, SCR_CNT, SCR_H, SCR_Y = SCR + 256, SCR + 272, SCR + 512, SCR + 1024
def stg_slot(j):
    return [104*KB, 112*KB, 120*KB][j]
SX, SW, SWS, SWO, SOUT, SWG, SWU, SWD, SWR, SGW = 8, 12, 16, 36, 40, 44, 48, 52, 56, 60
sGP, sMB, sW, sTH, sHH, sNON, sIDX, sKEY, sRT, sCT = 20, 21, 22, 23, 24, 25, 26, 27, 28, 29
sXL, sWL, sA, sB, sKVB, sW4K = 30, 31, 32, 33, 34, 35
sCNT = 64
sST0 = 66
SPIN = 1 << 16
vL16, vDMA, vRLO, vRMID, vRHI, vWOD, vWOT = 1, 2, 3, 6, 7, 24, 25
vCNTA, vONE, vWDD, vWA = 26, 27, 28, 120
SWA = 68
sXCC, sROT = 72, 65
WOF = 128

def emit(a, Ls):
    for x in Ls:
        if callable(x): x()
        elif isinstance(x, tuple):
            if x[0] == 'WAITVM':
                acc = getattr(a, 'accw', None)
                if acc and len(x) > 2:
                    a("s_memtime s[84:85]"); a("s_waitcnt lgkmcnt(0)")
                    a.wait_vm_tag(x[1])
                    a("s_memtime s[86:87]"); a("s_waitcnt lgkmcnt(0)")
                    a("s_sub_u32 s86, s86, s84"); a(f"s_add_u32 s{x[2]}, s{x[2]}, s86")
                else: a.wait_vm_tag(x[1])
            else: a(x[0], tag=x[1])
        else: a(x)

class Gen:
    def __init__(self, timing=False, opt=None):
        self.a = Asm(); self.timing = timing; self.nst = 0; self.opt = opt or {}
        self.stn = {}
        self.lab = 0
        self.tail = []
    def stamp(self, name, real=False):
        if self.opt.get("diag_at") == name and not self.timing:
            self.a("s_memrealtime s[66:67]")
            self.a("s_waitcnt lgkmcnt(0)")
        if not self.timing: return
        if self.timing == "light" and name != "rt1": return
        if name not in self.stn:
            self.stn[name] = len(self.stn)
        i = self.stn[name]
        assert i < 63
        if self.opt.get("rts"): real = True
        self.a(f"{'s_memrealtime' if real else 's_memtime'} s[100:101]")
        self.a("s_waitcnt lgkmcnt(0)")
        self.a(f"v_writelane_b32 v126, s100, {i}")
    def dstamp(self, expr_setup):
        if self.timing is not True or not self.opt.get("p1st"): return
        a = self.a
        a("s_memtime s[100:101]")
        a("s_waitcnt lgkmcnt(0)")
        for x in expr_setup: a(x)
        a("s_nop 0")
        a("v_writelane_b32 v126, s100, m0")
    def jitter(self, big=40):
        if not self.opt.get("jitter"): return
        a = self.a
        l = self.label("jit")
        a("s_memtime s[100:101]")
        a("s_waitcnt lgkmcnt(0)")
        a("s_lshr_b32 s100, s100, 3")
        a(f"s_and_b32 s100, s100, {self.opt['jitter']}")
        a(f"s_cbranch_scc1 {l}")
        a(f"s_sleep {big}")
        a(f"{l}:")
    def ool(self, cond, body, name=None):
        a = self.a
        l0 = self.label("ool"); l1 = self.label("ret")
        for x in cond[:-1]: a(x)
        a(f"{cond[-1]} {l0}")
        a(f"{l1}:")
        q = (list(a.ds_q), list(a.vm_q))
        main = a.lines
        tot = a.vm_total
        a.lines = []
        a(f"{l0}:")
        if name and self.opt.get("oolst"): self.stamp(name + "0")
        body()
        if name and self.opt.get("oolst"): self.stamp(name + "1")
        a(f"s_branch {l1}")
        self.tail += a.lines
        a.lines = main
        a.vm_total = tot
        a.ds_q, a.vm_q = q
    def label(self, p):
        self.lab += 1
        return f"L{p}_{self.lab}"

    def spin(self, body_load, check, tmp_s, sleep=2):
        a = self.a
        l0 = self.label("spin"); l1 = self.label("spun")
        q = (list(a.ds_q), list(a.vm_q))
        a(f"s_mov_b32 s{tmp_s}, {SPIN}")
        a(f"{l0}:")
        body_load()
        a("s_waitcnt vmcnt(0)")
        check()
        a(f"s_cbranch_scc1 {l1}")
        a(f"s_sleep {sleep}")
        a(f"s_sub_u32 s{tmp_s}, s{tmp_s}, 1")
        a(f"s_cmp_lg_u32 s{tmp_s}, 0")
        a(f"s_cbranch_scc1 {l0}")
        a(f"{l1}:")

    def prologue(self):
        a = self.a
        a.raw(head(KN))
        a("s_cmp_ge_u32 s2, 256")
        a("s_cbranch_scc1 L_exit")
        for sr, ka in ((SX, KA_X), (SW, KA_WQKV), (SWS, KA_WS), (SWR, KA_WR), (SGW, KA_GW), (SWO, KA_WO), (SOUT, KA_OUT), (SWG, KA_WG), (SWU, KA_WU), (SWD, KA_WD)):
            a(f"s_load_dwordx2 s[{sr}:{sr+1}], s[0:1], {ka}")
        if self.timing:
            self.stn["rt0"] = 0; self.stn["t0"] = 1
            a("s_memrealtime s[66:67]")
            a("s_memtime s[74:75]")
            a("v_mov_b32 v126, 0")
        if (self.opt.get("diag_len") or self.opt.get("diag_dbg")) and not self.timing: a("s_memrealtime s[66:67]")
        if self.opt.get("ctouch", 1) == 2:
            a("s_getpc_b64 s[6:7]")
            a("L_pc:")
            a("v_lshlrev_b32 v4, 7, v0")
            a("v_min_u32 v4, L_end-L_pc, v4")
            a("global_load_dword v125, v4, s[6:7]")
            a.vm_q = []
        if self.opt.get("late"):
            a(f"s_and_b32 s5, s2, {self.opt['late'][0]}")
            a(f"s_cmp_lg_u32 s5, {self.opt['late'][1]}")
            a("s_cbranch_scc1 L_nl")
            for _ in range(self.opt['late'][2]): a("s_sleep 127")
            a("L_nl:")
        a("v_lshrrev_b32 v1, 6, v0")
        a("v_and_b32 v0, 63, v0")
        a(f"v_readfirstlane_b32 s{sW}, v1")
        a("s_and_b32 s3, s2, 7")
        a("s_lshr_b32 s4, s2, 3")
        a(f"s_and_b32 s{sMB}, s4, 15")
        a("s_lshr_b32 s5, s4, 4")
        if self.opt.get("gpmap", 0) == 0:
            a("s_lshl_b32 s6, s3, 2")
            a(f"s_lshr_b32 s6, {self.opt.get('gptab', 0x76243510):#x}, s6")
            a("s_and_b32 s94, s6, 7")
            a(f"s_lshl_b32 s{sGP}, s94, 1")
            a(f"s_add_u32 s{sGP}, s{sGP}, s5")
        else:
            a("s_lshl_b32 s5, s5, 3")
            a(f"s_add_u32 s{sGP}, s3, s5")
        for sr, n in ((SX, 2048*2048), (SW, 1024*6144), (SWS, WS_SIZE)):
            a(f"s_mov_b32 s{sr+2}, {n:#x}")
            a(f"s_mov_b32 s{sr+3}, 0x20000")
        a(f"s_cmp_lt_u32 s{sW}, 4")
        a("s_cbranch_scc1 L_cons")

    def late_srds(self):
        a = self.a
        for sr, n in ((SWR, 2048), (SGW, 2048), (SWO, 1024*2048), (SOUT, 2048*2048), (SWG, 1024*7168), (SWU, 1024*7168), (SWD, 3584*2048)):
            a(f"s_mov_b32 s{sr+2}, {n:#x}")
            a(f"s_mov_b32 s{sr+3}, 0x20000")
        a(f"s_and_b32 s{sCT}, s4, 7")
        a("s_lshr_b32 s5, s4, 3")
        a(f"s_lshl_b32 s{sRT}, s3, 2")
        a(f"s_add_u32 s{sRT}, s{sRT}, s5")
        a(f"s_and_b32 s{sTH}, s{sW}, 1")
        a(f"s_bfe_u32 s{sHH}, s{sW}, 0x10001")
        a(f"s_lshl_b32 s{sW4K}, s{sW}, 12")
        a(f"s_lshl_b32 s{sKVB}, s{sGP}, 19")
        a(f"s_getreg_b32 s{sXCC}, hwreg(HW_REG_XCC_ID, 0, 16)")
        if self.opt.get("jmap", 1):
            a(f"s_cmp_gt_u32 s{sGP}, 3")
            a(f"s_subb_u32 s5, s{sGP}, 0")
            a(f"s_cmp_gt_u32 s{sGP}, 11")
            a("s_subb_u32 s5, s5, 0")
            a(f"s_and_b32 s93, s{sGP}, 7")
            a("s_cmp_eq_u32 s93, 3")
            a("s_cselect_b32 s5, 14, s5")
            a("s_lshl_b32 s5, s5, 4")
            a(f"s_add_u32 s93, s5, s{sMB}")
        else:
            a("s_mov_b32 s93, s2")

    def p2_setup(self, t):
        a = self.a
        a(f"v_lshlrev_b32 v{vL16}, 4, v0")
        a(f"v_add_u32 v{vDMA}, s{sW4K}, v{vL16}")
        a(f"s_lshl_b32 s6, s{sHH}, 14")
        a(f"v_add_u32 v{vRLO}, s6, v{vL16}")
        a(f"v_add_u32 v{vRMID}, {64*KB}, v{vRLO}")
        a(f"v_add_u32 v{vRHI}, {128*KB}, v{vRLO}")
        if self.opt.get("smf", 1):
            a(f"v_bfe_i32 v{t}, v0, 2, 1")
            a(f"v_and_b32 v{SEL+2}, 0x3f803f80, v{t}")
            a(f"v_xor_b32 v{SEL}, 0x3f803f80, v{SEL+2}")
            a(f"v_mov_b32 v{SEL+1}, v{SEL}")
            a(f"v_mov_b32 v{SEL+3}, v{SEL+2}")
        else:
            k_attn.sel_setup(a, t)
        a(f"v_lshrrev_b32 v{t}, 2, v0")
        a(f"v_lshlrev_b32 v{t}, 11, v{t}")
        a(f"v_and_b32 v{t+1}, 3, v0")
        a(f"v_lshl_add_u32 v{t}, v{t+1}, 4, v{t}")
        a(f"s_lshl_b32 s6, s{sCT}, 8")
        a(f"s_and_b32 s7, s{sW}, 3")
        a("s_lshl_b32 s7, s7, 6")
        a("s_add_u32 s6, s6, s7")
        a(f"v_add_u32 v{vWDD}, s6, v{t}")
        a(f"s_lshr_b32 s7, s{sW}, 2")
        a("s_lshl_b32 s7, s7, 20")
        a(f"v_add_u32 v{vWOD}, s7, v{vWDD}")
        a(f"v_bfe_u32 v{t}, v0, 2, 2")
        a(f"v_lshrrev_b32 v{t+1}, 5, v0")
        a(f"v_lshl_add_u32 v{t}, v{t+1}, 2, v{t}")
        a(f"v_lshlrev_b32 v{t}, 6, v{t}")
        a(f"v_bfe_u32 v{t+1}, v0, 4, 1")
        a(f"v_lshl_add_u32 v{t}, v{t+1}, 5, v{t}")
        a(f"v_and_b32 v{t+1}, 3, v0")
        a(f"v_lshl_add_u32 v{t}, v{t+1}, 3, v{t}")
        a(f"s_lshl_b32 s6, s{sW}, 10")
        a(f"s_add_u32 s6, s6, {96*KB}")
        a(f"v_add_u32 v{vWOT}, s6, v{t}")
        a(f"s_lshl_b32 s77, s{sW}, 10")
        a("s_mul_hi_u32 s5, s93, 0x924924A")
        a("s_mul_i32 s6, s5, 28")
        a("s_sub_u32 s6, s93, s6")
        a(f"s_mul_i32 s5, s5, {128*7168}")
        a("s_lshl_b32 s6, s6, 8")
        a("s_add_u32 s5, s5, s6")
        a(f"s_and_b32 s7, s{sW}, 3")
        a("s_lshl_b32 s6, s7, 6")
        a("s_add_u32 s5, s5, s6")
        a(f"v_lshrrev_b32 v{t}, 2, v0")
        a(f"v_mul_u32_u24 v{t}, 7168, v{t}")
        a(f"v_and_b32 v{t+1}, 3, v0")
        a(f"v_lshl_add_u32 v{t}, v{t+1}, 4, v{t}")
        a(f"v_add_u32 v{vWA}, s5, v{t}")
        a(f"v_and_b32 v{t}, 1, v0")
        a(f"v_mul_u32_u24 v{t}, 10, v{t}")
        a(f"v_add_u32 v{t}, 4, v{t}")
        a("s_mov_b32 s5, 0x11111111")
        a(f"v_mul_lo_u32 v127, v{t}, s5")
        for i in range(4): a(f"v_mov_b32 v{L+i}, 0")
        a(f"s_cmp_lt_u32 s{sW}, 4")
        a(f"s_cselect_b32 s{SWA}, s{SWG}, s{SWU}")
        a(f"s_cselect_b32 s{SWA+1}, s{SWG+1}, s{SWU+1}")
        a(f"s_mov_b32 s{SWA+2}, {1024*7168:#x}")
        a(f"s_mov_b32 s{SWA+3}, 0x20000")
        a(f"s_lshl_b32 s5, s{sW}, 6")
        a("v_add_u32 v121, s5, v0")
        a("v_min_u32 v121, 111, v121")
        a(f"s_mul_i32 s5, s{sRT}, 112")
        a("v_add_u32 v122, s5, v121")
        a("v_lshlrev_b32 v122, 3, v122")
        a("v_lshlrev_b32 v121, 1, v121")
        a(f"v_add_u32 v121, {SCR_H}, v121")
        a("v_lshrrev_b32 v123, 5, v0")
        a("v_lshlrev_b32 v123, 3, v123")
        a(f"s_lshr_b32 s7, s{sW}, 2")
        a("s_lshl_b32 s5, s7, 7")
        a(f"s_add_u32 s5, s5, {SCR_H}")
        a("v_add_u32 v124, s5, v123")
        a(f"v_lshlrev_b32 v{vCNTA}, 2, v0")
        a(f"v_add_u32 v{vCNTA}, {SCR + 1024}, v{vCNTA}")
        a(f"v_mov_b32 v{t}, {SCR_CNT}")
        a("v_cmp_eq_u32 vcc, 0, v0")
        a(f"v_mov_b32 v{vONE}, 1")
        a("s_nop 0")
        a(f"v_cndmask_b32 v{vCNTA}, v{vCNTA}, v{t}, vcc")
        self.pre_addr()

    def pre_addr(self):
        a = self.a
        a("s_mul_hi_u32 s5, s93, 0x924924A")
        a("s_mul_i32 s6, s5, 28")
        a("s_sub_u32 s6, s93, s6")
        a(f"s_lshr_b32 s7, s{sW}, 2")
        a("s_lshl_b32 s44, s7, 3")
        a("s_add_u32 s5, s5, s44")
        a(f"s_mul_i32 s5, s5, {3584*8}")
        a("s_lshl_b32 s6, s6, 10")
        a("s_add_u32 s5, s5, s6")
        a(f"s_and_b32 s6, s{sW}, 3")
        a("s_lshl_b32 s6, s6, 8")
        a("s_add_u32 s5, s5, s6")
        a(f"s_add_u32 s5, s5, {WS_HP:#x}")
        a("s_cmp_ge_u32 s93, 224")
        a("s_cselect_b32 s44, 0x80000000, s5")
        a(f"s_lshl_b32 s5, s{sRT}, 1")
        a("s_add_u32 s5, s5, s7")
        a("s_lshl_b32 s49, s5, 16")
        a("s_lshl_b32 s5, s5, 13")
        a("s_add_u32 s5, s5, s6")
        a(f"s_lshl_b32 s6, s{sCT}, 10")
        a("s_add_u32 s5, s5, s6")
        a(f"s_add_u32 s45, s5, {WS_YP:#x}")
        a(f"s_mul_i32 s46, s{sRT}, {112*2048}")
        a("s_lshl_b32 s5, s7, 17")
        a("s_add_u32 s46, s46, s5")
        a(f"s_lshl_b32 s47, s{sCT}, 3")
        a(f"s_add_u32 s47, s47, s{sW}")
        a("s_lshl_b32 s47, s47, 5")
        a(f"s_mul_i32 s5, s{sW}, {2*3584*8}")
        a(f"s_mul_i32 s6, s{sRT}, {112*8}")
        a("s_add_u32 s5, s5, s6")
        a(f"s_add_u32 s48, s5, {WS_HP:#x}")
        self.o_mark(False)
        self.o_setup(False)

    def code_touch(self, lab, cond=None):
        a = self.a
        l = self.label("ct")
        if cond:
            a(cond); a(f"s_cbranch_scc1 {l}")
        a("s_getpc_b64 s[6:7]")
        a(f"{lab}:")
        a(f"s_sub_u32 s6, s6, {lab}-{KN}")
        a("s_subb_u32 s7, s7, 0")
        a("s_lshr_b32 s5, s2, 3")
        a("s_lshl_b32 s5, s5, 11")
        a("v_and_b32 v4, 15, v0")
        a("v_lshl_add_u32 v4, v4, 7, s5")
        a(f"v_min_u32 v4, L_end-{KN}, v4")
        q = list(a.vm_q); a.vm_q = []
        a("s_mov_b64 exec, 0xffff")
        a("global_load_dword v125, v4, s[6:7]")
        a("s_mov_b64 exec, -1")
        a.vm_q = q
        a(f"{l}:")

    def nonce(self, v):
        a = self.a
        a(f"v_readfirstlane_b32 s{sNON}, v{v}")
        a("s_nop 3")
        a(f"s_mul_i32 s{sNON}, s{sNON}, 0x9E3779B1")
        a(f"s_add_u32 s{sNON}, s{sNON}, 0x7F4A7C15")

    def prod_tail(self):
        a = self.a
        if getattr(self, "tail_done", False):
            a("s_branch L_ptail")
            return
        self.tail_done = True
        a("L_ptail:")
        a("s_waitcnt lgkmcnt(0)")
        self.stamp("p1end")
        a(f"s_lshl_b32 s6, s{sW}, 11")
        a(f"s_add_u32 s6, s6, {QX - 4*2048}")
        a(f"v_add_u32 v4, s6, v{vL16}")
        a(f"v_mov_b32 v5, {SCR_IDX}")
        a(f"s_lshl_b32 s5, s{sGP}, 8")
        a(f"s_add_u32 s5, s5, {WS_FKV:#x}")
        a("s_barrier")
        a(f"ds_read_b32 v{P+2}, v5 offset:8")
        a(f"ds_read_b128 v[{Q0}:{Q0+3}], v4")
        a(f"ds_read_b128 v[{Q1}:{Q1+3}], v4 offset:1024")
        if self.opt.get("ppoll", 0):
            a("v_lshlrev_b32 v4, 2, v0")
            a(f"v_readfirstlane_b32 s{sNON}, v{P+2}")
            def ld(): a(f"buffer_load_dword v5, v4, s[{SWS}:{SWS+3}], s5 offen sc1")
            def chk():
                a(f"v_cmp_ne_u32 vcc, s{sNON}, v5")
                a("s_nop 1")
                a("s_cmp_eq_u64 vcc, 0")
            self.spin(ld, chk, 7, sleep=1)
            self.stamp("kvseen")
            a(f"s_sub_u32 s5, s{sW4K}, {4*4096}")
            a("s_lshl_b32 s5, s5, 1")
            for ci in (1, 2):
                emit(a, self.kv_addr(ci))
                a(f"s_add_u32 s{sA}, s{sA}, s5")
                for hf in range(2):
                    a(f"s_add_u32 m0, s5, {RING[ci] + hf*4096}")
                    a(f"s_add_u32 s{sA}, s{sA}, 4096" if hf else "s_nop 0")
                    for j in range(4):
                        a(f"buffer_load_dwordx4 v{vL16}, s[{SWS}:{SWS+3}], s{sA} offen offset:{j*1024} sc1 lds")
            self.stamp("kvi2")
        a("s_branch L_p2")

    def wo_cvt(self, part):
        a = self.a
        if part == 0:
            a(f"s_lshl_b32 s{sB}, s{sRT}, 15")
            a("s_lshl_b32 s5, s77, 1")
            a(f"s_sub_u32 s5, s5, {8*1024}")
            a("s_mov_b32 m0, s5")
            a(f"s_sub_u32 s6, s5, s77")
            a(f"s_sub_u32 s6, s6, {96*KB}")
            a(f"buffer_load_dwordx4 v{vWDD}, s[{SWO}:{SWO+3}], s{sB} offen nt lds", tag='wc')
            a("s_add_u32 m0, s5, 1024")
            a(f"v_add_u32 v100, s6, v{vWOT}")
            a(f"buffer_load_dwordx4 v{vWOD}, s[{SWO}:{SWO+3}], s{sB} offen nt lds", tag='wc')
            self.wcmark = a.vm_total
        elif part == 1:
            a(f"s_waitcnt vmcnt({a.vm_total - self.wcmark})")
            for k_ in range(2):
                for u in range(2):
                    a(f"ds_read_b64_tr_b16 v[{104+4*k_+2*u}:{105+4*k_+2*u}], v100 offset:{k_*1024 + u*512}")
            a(f"s_lshl_b32 s82, s{sCT}, 3")
            a(f"s_add_u32 s82, s82, s{sW}")
            a("s_lshl_b32 s82, s82, 5")
            a(f"s_add_u32 s82, s82, s{sRT}")
            a("s_lshl_b32 s6, s82, 10")
            a(f"s_add_u32 s6, s6, {WS_WT:#x}")
            a(f"s_sub_u32 s5, s6, {128*1024}")
            a(f"buffer_store_dwordx4 v[104:107], v{vL16}, s[{SWS}:{SWS+3}], s5 offen sc1", tag='wst')
            a(f"buffer_store_dwordx4 v[108:111], v{vL16}, s[{SWS}:{SWS+3}], s6 offen sc1", tag='wst')

    def wo_pub(self):
        a = self.a
        def body():
            a("s_lshl_b32 s5, s82, 2")
            a(f"s_add_u32 s5, s5, {WS_FW - 512:#x}")
            a("v_lshlrev_b32 v4, 9, v0")
            a(f"v_mov_b32 v5, s{sNON}")
            a(f"s_waitcnt vmcnt({a.vm_total - self.p2mark})")
            a("s_mov_b64 exec, 3")
            a(f"buffer_store_dword v5, v4, s[{SWS}:{SWS+3}], s5 offen sc1")
            a("s_mov_b64 exec, -1")
        self.ool([f"s_cmp_ge_u32 s{sW}, 4", "s_cbranch_scc1"], body)

    def loader_loop(self, lead, follow, v, cl, cf, sym=False):
        a = self.a
        cnt = cl + cf
        def nxt():
            a("s_mov_b32 s96, s78")
            a("s_mov_b32 s97, s79")
            a(f"s_add_u32 s78, s78, 1")
            a(f"s_and_b32 s78, s78, 15")
            a(f"s_add_u32 s79, s79, {STG}")
            a(f"s_cmp_eq_u32 s79, {4*STG}")
            a(f"s_cselect_b32 s79, 0, s79")
        a(f"s_and_b32 s78, s{sROT}, 15")
        a("s_mov_b32 s79, 0")
        a("s_mov_b32 s96, s78")
        a("s_mov_b32 s97, 0")
        a("s_mov_b32 s80, 1")
        a(f"s_and_b32 s5, s{sGP}, 1")
        a("s_lshl_b32 s98, s5, 13")
        a("s_xor_b32 s99, s98, 8192")
        if sym:
            a("s_add_u32 s98, s98, s88")
            a("s_add_u32 s99, s99, s88")
        a("s_lshl_b32 s90, s5, 17")
        a(f"s_xor_b32 s91, s90, {1 << 17}")
        a(f"s_lshl_b32 s89, s{sMB}, 18")
        a("s_add_u32 s89, s89, s90")
        a("s_waitcnt lgkmcnt(0)")
        self.stamp("karg")
        a.auto = False
        if sym and self.opt.get("pre", 0):
            a(f"s_cmp_eq_u32 s{sW}, 6")
            a("s_cbranch_scc1 L_pw")
            a(f"s_sub_u32 s5, s{sW}, 4")
            a("s_add_u32 s5, s5, s78")
            a("s_and_b32 s5, s5, 15")
            a("s_lshl_b32 s5, s5, 7")
            a("s_add_u32 s5, s5, s89")
            a("v_lshlrev_b32 v4, 11, v0")
            a(f"buffer_load_dword v125, v4, s[{SX}:{SX+3}], s5 offen")
            a("s_branch L_pj")
            a("L_pw:")
            NL = 12 * self.opt.get("pre", 0) * 3 // 3 * self.opt.get("prest", 3) // self.opt.get("pre", 0)
            a(f"s_mul_i32 s5, s4, {NL}")
            a(f"v_min_u32 v4, {NL - 1}, v0")
            a("v_add_u32 v4, s5, v4")
            a("v_mul_u32_u24 v5, 10923, v4")
            a("v_lshrrev_b32 v5, 16, v5")
            a("v_mul_u32_u24 v6, 6, v5")
            a("v_sub_u32 v6, v4, v6")
            a("s_lshl_b32 s5, s78, 6")
            a("v_add_u32 v5, s5, v5")
            a("v_and_b32 v5, 1023, v5")
            a("v_mul_u32_u24 v5, 6144, v5")
            a("v_lshrrev_b32 v4, 1, v6")
            a("v_lshl_add_u32 v5, v4, 11, v5")
            a("v_and_b32 v6, 1, v6")
            a("v_lshl_add_u32 v5, v6, 7, v5")
            a("s_lshl_b32 s5, s94, 8")
            a(f"buffer_load_dword v125, v5, s[{SW}:{SW+3}], s5 offen")
            a("L_pj:")
        lead(); follow(); nxt()
        self.stamp("iss0")
        if self.opt.get("e1"):
            a("s_waitcnt vmcnt(0)")
            self.stamp("ld0")
            a("s_barrier")
            lead(); nxt()
            a("s_mov_b32 s80, 2")
        else:
            lead(); nxt()
            self.stamp("iss1")
            a("s_mov_b32 s80, 2")
            a(f"s_waitcnt vmcnt({cl})")
            self.stamp("ld0")
            a("s_barrier")
        self.stamp("bar0")
        a(f"s_branch L_li{v}")
        a(f"L_lp{v}:")
        a("s_cmp_eq_u32 s80, 3")
        a(f"s_cbranch_scc1 L_li{v}")
        self.dstamp(["s_add_u32 m0, s80, 45"])
        a(f"s_waitcnt vmcnt({cl + cnt})")
        self.dstamp(["s_add_u32 m0, s80, 29"])
        a("s_barrier")
        a(f"L_li{v}:")
        self.jitter(30)
        XP = self.opt.get("sp", 0)
        def spf(part):
            if not XP: return
            rows = list(range(v, 64, 3))
            rows = rows[:len(rows) // 2] if part == 0 else rows[len(rows) // 2:]
            l = self.label("sp")
            if part == 0:
                a(f"s_add_u32 s5, s78, {XP}")
                a("s_and_b32 s5, s5, 15")
                a("s_lshl_b32 s5, s5, 7")
                a("s_add_u32 s5, s5, s89")
                a(f"s_add_u32 s86, s{SX}, s5")
                a(f"s_addc_u32 s87, s{SX+1}, 0")
            a(f"s_cmp_gt_u32 s80, {15 - XP}")
            a(f"s_cbranch_scc1 {l}")
            for r in rows: a(f"s_load_dword s88, s[86:87], {r*2048}")
            a(f"{l}:")
        spf(0)
        follow(); lead()
        spf(1)
        nxt()
        a("s_add_u32 s80, s80, 1")
        a("s_cmp_lt_u32 s80, 16")
        a(f"s_cbranch_scc1 L_lp{v}")
        follow()
        a("s_waitcnt lgkmcnt(0)")
        a.auto = True
        a.reset_q()
        a(f"s_waitcnt vmcnt({cl + cnt + cf})")
        a("s_barrier")
        self.late_srds()
        self.p2_setup(82)
        a(f"s_waitcnt vmcnt({cnt})")
        a("s_barrier")
        a("s_waitcnt vmcnt(0)")
        a("s_barrier")
        self.prod_tail()

    def producer(self):
        a = self.a
        a(f"s_mul_i32 s{sROT}, s3, {self.opt.get('rot', 1)}")
        a("v_lshrrev_b32 v2, 3, v0")
        a("v_lshrrev_b32 v3, 4, v0")
        a("v_and_b32 v4, 7, v0")
        a(f"s_cmp_eq_u32 s{sW}, 7")
        a("s_cbranch_scc1 L_help")
        VX, VW = 88, 92
        if self.opt.get("sym", 1):
            a(f"s_sub_u32 s7, s{sW}, 4")
            a("s_mul_i32 s6, s7, 3")
            a("s_min_u32 s6, s6, 5")
            a("v_xor_b32 v5, v4, v3")
            a("s_and_b32 s5, s6, 1")
            a("s_lshl_b32 s5, s5, 2")
            a("v_xor_b32 v5, s5, v5")
            a("v_xor_b32 v6, 4, v5")
            a(f"s_lshl_b32 s5, s{sMB}, 4")
            a("s_add_u32 s5, s5, s6")
            a("s_lshl_b32 s5, s5, 3")
            a("v_add_u32 v7, s5, v2")
            a("v_lshlrev_b32 v7, 11, v7")
            a(f"v_lshl_add_u32 v{VX}, v5, 4, v7")
            a("v_lshl_add_u32 v6, v6, 4, v7")
            a(f"v_add_u32 v{VX+1}, {16384-1024}, v6")
            a(f"v_add_u32 v{VX+2}, {2*(16384-1024)}, v{VX}")
            a("v_and_b32 v3, 1, v3")
            a("v_lshlrev_b32 v3, 2, v3")
            a("v_xor_b32 v4, v4, v3")
            a("v_mul_u32_u24 v2, 6144, v2")
            a("v_lshl_add_u32 v2, v4, 4, v2")
            a(f"s_lshl_b32 s5, s{sGP}, 7")
            a("s_lshl_b32 s88, s7, 11")
            a("s_add_u32 s5, s5, s88")
            a(f"v_add_u32 v{VW}, s5, v2")
            a(f"v_xor_b32 v5, 32, v{VW}")
            for u in range(1, 4):
                a(f"v_add_u32 v{VW+u}, {u*(49152-1024)}, v{5 if u & 1 else VW}")
            a("s_lshl_b32 s88, s6, 10")
            a("s_lshl_b32 s87, s7, 13")
            a("s_add_u32 s87, s87, 16384")
            def xhalf(s_st, s_buf, s_lo, s_mo):
                a(f"s_add_u32 m0, s{s_buf}, s{s_lo}")
                a(f"s_lshl_b32 s{sA}, s{s_st}, 7")
                a(f"s_add_u32 s{sA}, s{sA}, s{s_mo}")
                for j in range(3):
                    a(f"buffer_load_dwordx4 v{VX+j}, s[{SX}:{SX+3}], s{sA} offen offset:{j*1024} lds")
            def lead():
                xhalf(78, 79, 98, 90)
                a("s_add_u32 m0, s79, s87")
                a(f"s_mul_i32 s{sB}, s78, {64*6144}")
                for hf in range(2):
                    if hf:
                        a("s_add_u32 m0, m0, 4096")
                        a(f"s_add_u32 s{sB}, s{sB}, {32*6144}")
                    for u in range(4):
                        a(f"buffer_load_dwordx4 v{VW+u}, s[{SW}:{SW+3}], s{sB} offen offset:{u*1024} {self.opt.get('wfl', '')} lds")
            self.loader_loop(lead, lambda: xhalf(96, 97, 99, 91), 0, 11, 3, sym=True)
            self.helper()
            return
        a("v_xor_b32 v5, v4, v3")
        a("v_xor_b32 v6, 4, v5")
        a(f"s_lshl_b32 s5, s{sMB}, 7")
        a("v_add_u32 v7, s5, v2")
        a("v_lshlrev_b32 v7, 11, v7")
        a(f"v_lshl_add_u32 v{VX}, v5, 4, v7")
        a("v_lshl_add_u32 v6, v6, 4, v7")
        a(f"v_add_u32 v{VX+1}, {16384-1024}, v6")
        a(f"v_add_u32 v{VX+2}, {2*(16384-1024)}, v{VX}")
        a(f"v_add_u32 v{VX+3}, {3*(16384-1024)}, v6")
        a("v_and_b32 v3, 1, v3")
        a("v_lshlrev_b32 v3, 2, v3")
        a("v_xor_b32 v4, v4, v3")
        a("v_mul_u32_u24 v2, 6144, v2")
        a("v_lshl_add_u32 v2, v4, 4, v2")
        a(f"s_lshl_b32 s6, s{sGP}, 7")
        a(f"v_add_u32 v{VW}, s6, v2")
        if self.opt.get("m16", 1):
            a(f"v_xor_b32 v5, 32, v{VW}")
            for u in range(1, 4):
                a(f"v_add_u32 v{VW+u}, {u*(49152-1024)}, v{5 if u & 1 else VW}")
        else:
            for u in range(1, 4):
                a(f"v_add_u32 v{VW+u}, {u*(49152-1024)}, v{VW}")
        a(f"s_cmp_eq_u32 s{sW}, 5")
        a("s_cbranch_scc1 L_ld1")
        a(f"s_cmp_eq_u32 s{sW}, 6")
        a("s_cbranch_scc1 L_ld2")
        LS = [range(0, 3), range(3, 6), range(6, 8)]
        FS = [range(0, 2), range(2, 5), range(5, 8)]
        for v in range(3):
            a.reset_q()
            if v: a(f"L_ld{v}:")
            def xhalf(idx, s_st, s_buf, s_lo, s_mo):
                a(f"s_lshl_b32 s{sA}, s{s_st}, 7")
                a(f"s_add_u32 s{sA}, s{sA}, s{s_mo}")
                a(f"s_add_u32 s5, s{s_buf}, s{s_lo}")
                cur = 0; first = True
                for i in idx:
                    q, j = divmod(i, 4)
                    if first or q != cur:
                        a(f"s_add_u32 m0, s5, {q*4096}")
                        d = (q - (0 if first else cur)) * 65536
                        a(f"s_add_u32 s{sA}, s{sA}, {d}" if d else "s_nop 0")
                        cur = q; first = False
                    a(f"buffer_load_dwordx4 v{VX+j}, s[{SX}:{SX+3}], s{sA} offen offset:{j*1024} lds")
            def lead(v=v):
                xhalf(LS[v], 78, 79, 98, 90)
                a(f"s_mul_i32 s{sB}, s78, {64*6144}")
                for hf in range(2):
                    a(f"s_add_u32 m0, s79, {16384 + v*8192 + hf*4096}")
                    d = v * 2048 if hf == 0 else 32 * 6144
                    a(f"s_add_u32 s{sB}, s{sB}, {d}" if d else "s_nop 0")
                    for u in range(4):
                        a(f"buffer_load_dwordx4 v{VW+u}, s[{SW}:{SW+3}], s{sB} offen offset:{u*1024} {self.opt.get('wfl', '')} lds")
            def follow(v=v):
                xhalf(FS[v], 96, 97, 99, 91)
            self.loader_loop(lead, follow, v, len(LS[v]) + 8, len(FS[v]))
        self.helper()

    def helper(self):
        a = self.a
        opt = self.opt
        a.reset_q()
        a("L_help:")
        if opt.get("hprio", 1): a("s_setprio 3")
        a(f"s_lshl_b32 s5, s{sROT}, 1")
        a("s_add_u32 s5, s5, s4")
        a("s_and_b32 s5, s5, 31")
        a(f"s_mul_i32 s5, s5, {32*6144}")
        a(f"s_lshl_b32 s6, s94, 8")
        a("s_add_u32 s92, s5, s6")
        a("v_mul_u32_u24 v94, 6144, v2")
        a("v_bfe_u32 v95, v0, 1, 2")
        a("v_min_u32 v95, 2, v95")
        a("v_lshl_add_u32 v94, v95, 11, v94")
        a("v_and_b32 v95, 1, v0")
        a(f"v_lshl_add_u32 v94, v95, {10 if opt.get('gpmap', 0) else 7}, v94")
        a("s_lshr_b32 s76, s4, 1")
        a("s_waitcnt lgkmcnt(0)")
        AH = opt.get("ahead", 4)
        if opt.get("wts"):
            a("s_lshl_b32 s5, s4, 1")
            a("s_mul_i32 s5, s5, 6144")
            a("s_lshl_b32 s6, s94, 8")
            a("s_add_u32 s92, s5, s6")
        def wsm(st):
            a(f"s_add_u32 s5, s{sROT}, {st}")
            a("s_and_b32 s5, s5, 15")
            a(f"s_mul_i32 s5, s5, {64*6144}")
            a("s_add_u32 s5, s5, s92")
            q = list(a.vm_q); a.vm_q = []
            a("s_mov_b64 exec, 0x3f3f")
            a(f"buffer_load_dword v125, v94, s[{SW}:{SW+3}], s5 offen")
            a("s_mov_b64 exec, -1")
            a.vm_q = q + [(None, set())]
        def wtouch(n):
            if opt.get("nowt"): return
            if opt.get("wts"):
                for st in (range(opt["wts"] - 1, AH + 1) if n < 0 else [n + AH + 1]): wsm(st)
                return
            l = self.label("wt")
            if n < 0:
                P0 = opt.get("prest", 3) if opt.get("pre", 0) and opt.get("sym", 1) else 0
                a(f"s_sub_u32 s5, s76, {P0}")
                a(f"s_cmp_gt_u32 s5, {AH - P0}")
            else: a(f"s_cmp_lg_u32 s76, {n + AH + 1}")
            a(f"s_cbranch_scc1 {l}")
            q = list(a.vm_q)
            for i in range(4):
                a.vm_q = []
                a(f"buffer_load_dword v125, v94, s[{SW}:{SW+3}], s92 offen {opt.get('wtfl0', '') if n < 0 else opt.get('wtfl', '')}")
                if i < 3: a(f"s_add_u32 s92, s92, {8*6144}")
            a.vm_q = q
            a(f"{l}:")
        XA = opt.get("xahead", 0)
        if XA:
            a(f"s_lshl_b32 s5, s{sMB}, 7")
            a(f"s_and_b32 s6, s{sGP}, 1")
            a("s_lshl_b32 s6, s6, 6")
            a("s_add_u32 s5, s5, s6")
            a("v_add_u32 v93, s5, v0")
            a("v_lshlrev_b32 v93, 11, v93")
        def xtouch(st):
            if not XA or st > 15: return
            a(f"s_add_u32 s5, s{sROT}, {st}")
            a("s_and_b32 s5, s5, 15")
            a("s_lshl_b32 s5, s5, 7")
            q = list(a.vm_q); a.vm_q = []
            a(f"buffer_load_dword v125, v93, s[{SX}:{SX+3}], s5 offen")
            a.vm_q = q + [(None, set())]
        XQ = opt.get("xq", {"0": [2], "1": [3]})
        def xquad(n):
            if str(n) not in XQ: return
            a("v_lshrrev_b32 v4, 2, v0")
            a("v_and_b32 v4, 7, v4")
            a("v_and_b32 v5, 3, v0")
            a("v_lshlrev_b32 v4, 11, v4")
            a("v_lshl_add_u32 v4, v5, 7, v4")
            a("s_lshl_b32 s5, s2, 14")
            q = list(a.vm_q); a.vm_q = []
            a("s_mov_b32 exec_hi, 0")
            for qq in XQ[str(n)]:
                a(f"buffer_load_dword v125, v4, s[{SX}:{SX+3}], s5 offen offset:{qq*512}")
                a.vm_q = []
                q.append((None, set()))
            a("s_mov_b32 exec_hi, -1")
            a.vm_q = q
        xquad(-1)
        if XA:
            for st in range(opt.get("x0", 2), 3 + XA): xtouch(st)
        if opt.get("wt0", 1): wtouch(-1)
        self.late_srds()
        self.p2_setup(82)
        WB, XV, RR = 128, 48, 56
        sTOK = 96
        a(f"s_lshl_b32 s{sTOK}, s{sMB}, 7")
        a(f"s_lshl_b32 s5, s{sGP}, 3")
        a(f"s_add_u32 s{sTOK}, s{sTOK}, s5")
        a(f"s_mov_b32 s{sA}, {WS_EPOCH:#x}")
        a("v_mov_b32 v4, 0")
        a(f"buffer_load_dword v81, v4, s[{SWS}:{SWS+3}], s{sA} offen sc1")
        a("v_lshrrev_b32 v4, 3, v0")
        a("v_add_u32 v4, s5, v4")
        a("v_bfe_u32 v5, v4, 1, 3")
        a("v_and_b32 v80, 7, v0")
        a("v_xor_b32 v5, v5, v80")
        a("v_lshlrev_b32 v79, 4, v5")
        a("v_lshlrev_b32 v4, 7, v4")
        a("v_lshl_add_u32 v80, v80, 4, v4")
        a(f"v_add_u32 v78, {2*STG}, v80")
        a(f"v_mov_b32 v{RR}, 0")
        a(f"v_mov_b32 v{RR+1}, 0")
        def wld(n):
            a(f"s_add_u32 s5, s{sROT}, {n}")
            a("s_and_b32 s5, s5, 15")
            a("s_lshl_b32 s5, s5, 7")
            for m, srd_ in enumerate((SWR, SGW)):
                a(f"buffer_load_dwordx4 v[{WB+8*n+4*m}:{WB+8*n+4*m+3}], v79, s[{srd_}:{srd_+3}], s5 offen")
        def dots(n):
            xv = XV + 4*(n & 1)
            for i in range(4):
                for m in range(2):
                    a(f"v_dot2c_f32_bf16 v{RR+m}, v{xv+i}, v{WB+8*n+4*m+i}")
        WL = opt.get("wl", 3)
        for n in range(WL): wld(n)
        def rgs(n):
            xv = XV + 4*(n & 1)
            a(f"ds_read_b128 v[{xv}:{xv+3}], v{80 if n % 4 < 2 else 78} offset:{(n & 1)*STG}")
            if n + WL < 16: wld(n + WL)
            if n: dots(n - 1)
            a("s_waitcnt lgkmcnt(0)")
            if n == 15: dots(15)
        def xcpub():
            self.nonce(81)
            a(f"v_mov_b32 v82, s{sXCC}")
            a(f"v_mov_b32 v83, s{sNON}")
            a("v_mov_b32 v4, 0")
            a(f"s_lshl_b32 s7, s{sGP}, 4")
            a(f"s_add_u32 s7, s7, s{sMB}")
            a("s_lshl_b32 s7, s7, 3")
            a(f"s_add_u32 s7, s7, {WS_XC:#x}")
            a("s_mov_b64 exec, 1")
            a(f"buffer_store_dwordx2 v[82:83], v4, s[{SWS}:{SWS+3}], s7 offen sc1")
            a("s_mov_b64 exec, -1")
        def rgfin():
            a("s_nop 2")
            for mod in ("quad_perm:[1,0,3,2]", "quad_perm:[2,3,0,1]", "row_half_mirror"):
                a("s_nop 0")
                for m in range(2):
                    a(f"v_add_f32_dpp v{RR+m}, v{RR+m}, v{RR+m} {mod} row_mask:0xf bank_mask:0xf")
            R, G = RR, RR + 1
            round_bf16(a, G)
            sigmoid(a, G)
            round_bf16(a, G)
            a(f"v_cvt_pk_bf16_f32 v{R}, v{R}, v{R}")
            a(f"v_ashrrev_i32 v4, 31, v{R}")
            a("v_or_b32 v4, 0x80000000, v4")
            a(f"v_xor_b32 v{R}, v{R}, v4")
            a(f"v_and_b32 v{R}, 0xffff0000, v{R}")
            a("v_lshrrev_b32 v4, 3, v0")
            a(f"s_sub_u32 s5, 2047, s{sTOK}")
            a("v_sub_u32 v5, s5, v4")
            a(f"v_or_b32 v{R}, v{R}, v5")
            dpp_umax(a, R)
            a(f"v_mov_b32 v{XV}, v{G}")
            a(f"v_mov_b32 v{XV+1}, s{sNON}")
            a(f"v_mov_b32 v{R+1}, s{sNON}")
            a(f"s_lshl_b32 s5, s{sTOK}, 3")
            a(f"s_add_u32 s5, s5, {WS_G:#x}")
            a(f"s_add_u32 s6, s{sTOK}, {WS_RK - 63:#x}")
            a("s_mov_b32 exec_lo, 0")
            a("s_mov_b32 exec_hi, 0x80000000")
            a(f"buffer_store_dwordx2 v[{R}:{R+1}], v0, s[{SWS}:{SWS+3}], s6 offen sc1")
            a("s_mov_b32 exec_lo, 0x01010101")
            a("s_mov_b32 exec_hi, 0x01010101")
            a(f"buffer_store_dwordx2 v[{XV}:{XV+1}], v0, s[{SWS}:{SWS+3}], s5 offen sc1")
            a("s_mov_b64 exec, -1")
        def kvt(i):
            a("v_lshlrev_b32 v4, 7, v0")
            a(f"s_lshl_b32 s6, s{sMB}, 15")
            a(f"s_add_u32 s6, s6, s{sKVB}")
            if i: a(f"s_add_u32 s6, s6, {i*8192}")
            q = list(a.vm_q); a.vm_q = []
            a(f"buffer_load_dword v125, v4, s[{SWS}:{SWS+3}], s6 offen {opt.get('ktfl', 'sc1')}")
            a.vm_q = q + [(None, set())]
        def warm():
            a("v_lshlrev_b32 v4, 7, v0")
            a(f"s_lshl_b32 s6, s{sMB}, 15")
            a(f"s_add_u32 s6, s6, s{sKVB}")
            if opt.get("ctouch2", 1): self.code_touch("L_pcB")
            a(f"s_lshl_b32 s5, s{sGP}, 8")
            a(f"s_add_u32 s5, s5, {WS_FKV:#x}")
            a("v_lshlrev_b32 v4, 2, v0")
            q = list(a.vm_q); a.vm_q = []
            a(f"buffer_load_dword v125, v4, s[{SWS}:{SWS+3}], s5 offen sc1")
            a.vm_q = q + [(None, set())]
        seq = lambda *f: (lambda: [g() for g in f])
        extras = {n: (lambda n=n: rgs(n)) for n in range(16)}
        extras[3] = seq(extras[3], xcpub)
        extras[13] = seq(extras[13], warm)
        extras[15] = seq(extras[15], rgfin)
        for n in range(16):
            if self.opt.get("p1st"): self.dstamp([f"s_mov_b32 m0, {32 + n}"])
            elif not self.opt.get("bst"): self.stamp(f"s{n}")
            a("s_barrier")
            if n == 0: self.stamp("bar0")
            self.jitter(30)
            if n == 0 and not opt.get("wt0", 1): wtouch(-1)
            xquad(n)
            xtouch(n + 3 + XA)
            if n + AH + 1 <= 15: wtouch(n)
            if n in extras: extras[n]()
            for i_, n_ in enumerate(opt.get("kvt", [12, 12, 13, 13])):
                if n_ == n: kvt(i_)
        a("s_setprio 0")
        a(f"v_mov_b32 v86, s{sNON}")
        a("v_mov_b32 v87, 0")
        a(f"v_mov_b32 v4, {SCR_IDX}")
        a("ds_write_b32 v4, v86 offset:8")
        a("ds_write_b32 v4, v87 offset:16")
        for i in range(4): a(f"ds_write_b32 v4, v87 offset:{128 + 4*i}")
        a("v_lshlrev_b32 v4, 2, v0")
        a(f"v_add_u32 v4, {SCR_H}, v4")
        a("ds_write_b32 v4, v87")
        self.prod_tail()

    SWT = 208
    def sw_ld(self):
        for i in range(2):
            self.a(f"buffer_load_dwordx4 v[{self.SWT+4*i}:{self.SWT+4*i+3}], v{vL16}, s[{SWS}:{SWS+3}], s97 offen offset:{i*1024} sc1")
    def only7(self, body):
        self.n7 = getattr(self, "n7", 0) + 1
        self.ool([f"s_lshl_b32 s5, s2, 3", f"s_add_u32 s5, s5, s{sW}", f"s_cmp_eq_u32 s5, {self.opt.get('swg', 0)*8 + 7}", "s_cbranch_scc1"], body, name=f"sw{self.n7}_")
    def sweep1(self):
        def body():
            self.a(f"s_mov_b32 s97, {WS_RK:#x}")
            self.sw_ld()
        self.only7(body)
        self.swmark = self.a.vm_total
    def sweep2(self):
        a = self.a
        T = self.SWT
        def body():
            l2 = self.label("swok")
            a(f"s_waitcnt vmcnt({min(63, a.vm_total - self.swmark)})")
            self.tagchk(T, 4, T+8, T+9)
            a(f"s_cbranch_scc1 {l2}")
            self.spin(self.sw_ld, lambda: self.tagchk(T, 4, T+8, T+9), 7, sleep=4)
            a(f"{l2}:")
            a(f"v_max_u32 v{T+8}, v{T}, v{T+2}")
            a(f"v_max3_u32 v{T+8}, v{T+8}, v{T+4}, v{T+6}")
            dpp_umax(a, T+8)
            a(f"v_mov_b32 v{T+9}, s{sNON}")
            a(f"s_mov_b32 s5, {WS_IDX - WS_EPOCH:#x}")
            a(f"s_mov_b32 s6, {WS_EPOCH:#x}")
            a("v_mov_b32 v4, 0")
            a("v_mov_b32 v5, s5")
            a("s_mov_b32 exec_lo, 0")
            a("s_mov_b32 exec_hi, 0x80000000")
            a(f"buffer_store_dwordx2 v[{T+8}:{T+9}], v5, s[{SWS}:{SWS+3}], s6 offen sc1")
            a(f"buffer_store_dword v{T+9}, v4, s[{SWS}:{SWS+3}], s6 offen sc1")
            a("s_mov_b64 exec, -1")
        self.only7(body)
    def idx_ld(self):
        self.a(f"buffer_load_dwordx2 v[30:31], v4, s[{SWS}:{SWS+3}], s83 offen sc1")
    def idx_get(self, part):
        a = self.a
        if part == 0:
            a(f"s_mov_b32 s83, {WS_IDX:#x}")
            a("v_mov_b32 v4, 0")
            self.idx_ld()
        elif part == 1:
            a(f"v_readfirstlane_b32 s{sKEY}, v30")
            a("v_readfirstlane_b32 s96, v31")
        else:
            def slow():
                a("v_mov_b32 v4, 0")
                def chk():
                    a(f"v_cmp_ne_u32 vcc, s{sNON}, v31"); a("s_nop 1"); a("s_cmp_eq_u64 vcc, 0")
                self.spin(self.idx_ld, chk, 7, sleep=16)
                a(f"v_readfirstlane_b32 s{sKEY}, v30")
                a("s_nop 3")
            self.ool([f"s_cmp_lg_u32 s96, s{sNON}", "s_cbranch_scc1"], slow)
            a(f"s_and_b32 s{sIDX}, s{sKEY}, 0xffff")
            a(f"s_sub_u32 s{sIDX}, 2047, s{sIDX}")
            a(f"s_and_b32 s{sIDX}, s{sIDX}, 2047")
            a("s_mul_hi_u32 s5, s93, 0x924924A")
            a("s_min_u32 s5, s5, 7")
            a("s_lshl_b32 s5, s5, 8")
            a(f"s_lshl_b32 s97, s{sIDX}, 11")
            a("s_add_u32 s97, s97, s5")

    def consumer(self):
        a = self.a
        a.reset_q()
        a("L_cons:")
        self.late_srds()
        a("s_waitcnt lgkmcnt(0)")
        a(f"s_mov_b32 s{sA}, {WS_EPOCH:#x}")
        a("v_mov_b32 v4, 0")
        a(f"buffer_load_dword v46, v4, s[{SWS}:{SWS+3}], s{sA} offen sc1")
        if self.opt.get("ctouch", 1) == 1:
            self.code_touch("L_pcA", f"s_cmp_lg_u32 s{sW}, 0")
        a("v_and_b32 v4, 31, v0")
        a("v_lshrrev_b32 v5, 5, v0")
        a("v_bfe_u32 v29, v0, 1, 3")
        a(f"s_lshl_b32 s5, s{sTH}, 13")
        a("v_lshl_add_u32 v4, v4, 7, s5")
        XA, WA = 88, 96
        for ks in range(4):
            a(f"v_or_b32 v30, {2*ks}, v5")
            a("v_xor_b32 v30, v30, v29")
            a(f"v_lshl_add_u32 v{XA+ks}, v30, 4, v4")
            a(f"v_add_u32 v{XA+4+ks}, {2*STG}, v{XA+ks}")
        a("v_bfe_u32 v29, v0, 2, 2")
        a("v_lshl_add_u32 v4, v5, 3, v29")
        a("v_lshlrev_b32 v4, 7, v4")
        a("v_bfe_u32 v5, v0, 4, 1")
        a("v_lshlrev_b32 v5, 1, v5")
        a("v_bfe_u32 v30, v0, 1, 1")
        a("v_or_b32 v5, v5, v30")
        a(f"s_lshl_b32 s5, s{sHH}, 2")
        a("v_or_b32 v5, s5, v5")
        a("v_lshrrev_b32 v29, 1, v29")
        a("v_lshlrev_b32 v29, 2, v29")
        a("v_xor_b32 v5, v5, v29")
        a("v_lshl_add_u32 v4, v5, 4, v4")
        a("v_and_b32 v5, 1, v0")
        a("v_lshl_add_u32 v4, v5, 3, v4")
        a(f"v_add_u32 v{WA}, 16384, v4")
        a(f"v_add_u32 v{WA+1}, {16384+2*STG}, v4")
        self.p2_setup(40)
        a(f"s_lshl_b32 s81, s{sGP}, 7")
        a(f"s_add_u32 s81, s81, {WS_XC:#x}")
        a("v_and_b32 v47, 15, v0")
        a("v_lshlrev_b32 v47, 3, v47")
        a("v_mov_b32 v44, 0")
        a("v_mov_b32 v45, 0")
        FR = [48, 68]
        ACC = 128
        acc = lambda tt, sg: ACC + (tt*3 + sg) * 16
        def reads(n, ks, fs):
            buf = n % 4
            bo = (buf & 1) * STG
            xa = XA + (buf >> 1) * 4 + ks
            wa = WA + (buf >> 1)
            f = FR[fs]
            w = lambda sg, u: f"ds_read_b64_tr_b16 v[{f+8+4*sg+2*u}:{f+9+4*sg+2*u}], v{wa} offset:{bo + sg*8192 + ks*2048 + u*512}"
            x = lambda tt: f"ds_read_b128 v[{f+4*tt}:{f+4*tt+3}], v{xa} offset:{bo + tt*4096}"
            return [x(0), w(1,0), w(1,1), w(2,0), w(2,1), x(1), w(0,0), w(0,1)]
        def mfmas(fs, first):
            f = FR[fs]
            Ls = []
            for tt, sg in ((0,1), (0,2), (1,1), (1,2), (0,0), (1,0)):
                X, W_ = f + 4*tt, f + 8 + 4*sg
                d = acc(tt, sg)
                c = "0" if first else d
                if self.opt.get("m16test"):
                    o = 8 * fs
                    Ls.append(mf16(d + o, W_, X, d + o) + "\n" + mf16(d + o + 4, X, W_, d + o + 4))
                else:
                    Ls.append(mf32(d, W_, X, c) if sg < 2 else mf32(d, X, W_, c))
            return Ls
        for i in range(96): a(f"v_mov_b32 v{ACC+i}, 0")
        if self.opt.get("idle0"): a(f"s_sleep {self.opt['idle0']}")
        a("s_mov_b32 s80, 0")
        a("s_barrier")
        self.stamp("bar0")
        if self.opt.get("clk"): self.stamp("rbar0", True)
        for r in reads(0, 0, 0): a(r)
        a("s_waitcnt lgkmcnt(0)")
        a.raw(".p2align 6")
        a("L_cl:")
        for n in range(4):
            for ks in range(4):
                fs = ks & 1
                M = mfmas(fs, False)
                last = (n == 3 and ks == 3)
                R = reads(n, ks + 1, fs ^ 1) if ks < 3 else reads((n + 1) % 4, 0, fs ^ 1)
                BP = self.opt.get("bpos", 2) if ks == 3 else 0
                for i, m in enumerate(M):
                    if ks == 3 and i == BP:
                        a.wait_ds_all()
                        if last:
                            a("s_cmp_eq_u32 s80, 3")
                            a("s_cbranch_scc1 L_cx")
                        self.dstamp(["s_lshl_b32 s101, s80, 2", f"s_add_u32 m0, s101, {33 + n}"])
                        a("s_barrier")
                    a(m)
                    G_ = self.opt.get("rpg", 2)
                    if i >= BP:
                        for r in R[G_*(i-BP):G_*(i-BP)+G_]: a(r)
            if n == 0:
                l1 = self.label("cj"); l2 = self.label("cj")
                q = (list(a.ds_q), list(a.vm_q))
                a("s_cmp_lg_u32 s80, 1")
                a(f"s_cbranch_scc1 {l1}")
                a("s_waitcnt vmcnt(0)")
                self.nonce(46)
                a(f"{l1}:")
                a("s_cmp_lg_u32 s80, 2")
                a(f"s_cbranch_scc1 {l2}")
                a(f"buffer_load_dwordx2 v[44:45], v47, s[{SWS}:{SWS+3}], s81 offen sc1")
                a(f"{l2}:")
                a.ds_q, a.vm_q = q[0], []
        a("s_add_u32 s80, s80, 1")
        a("s_waitcnt lgkmcnt(0)")
        a("s_branch L_cl")
        a("L_cx:")
        for m in mfmas(1, False)[self.opt.get("bpos", 2):]: a(m)
        a("s_waitcnt vmcnt(0)")
        a(f"v_cmp_ne_u32 vcc, s{sXCC}, v44")
        a(f"v_cmp_ne_u32 s[96:97], s{sNON}, v45")
        a("s_nop 1")
        a("s_or_b64 s[96:97], vcc, s[96:97]")
        self.stamp("p1end")
        if self.opt.get("clk"): self.stamp("rp1end", True)
        a(f"s_lshl_b32 s6, s{sMB}, 15")
        a(f"s_add_u32 s6, s6, s{sKVB}")
        a(f"s_lshl_b32 s5, s{sHH}, 14")
        a(f"s_lshl_b32 s7, s{sTH}, 13")
        a("s_add_u32 s5, s5, s7")
        a("s_add_u32 s6, s6, s5")
        a(f"s_add_u32 s5, s5, {RING[0]}")
        a(f"v_add_u32 v4, s5, v{vL16}")
        a(f"v_add_u32 v5, 4096, v{vL16}")
        a(f"s_mov_b32 s98, {f2u(QSCALE):#x}")
        a("s_mov_b32 s99, s98")
        T = 48
        if self.opt.get("noloc"): a("s_mov_b64 s[96:97], -1")
        a("s_cmp_eq_u64 s[96:97], 0")
        a("s_cbranch_scc1 L_kvloc")
        q = list(a.vm_q)
        for mode in ("sc1", self.opt.get("stfl", "")):
            if mode != "sc1": a("L_kvloc:")
            for i, (tt, sg) in enumerate(((0,1), (0,2), (1,1), (1,2))):
                d = acc(tt, sg); t = T + 8*i
                for j in range(8):
                    a(f"v_cvt_pk_bf16_f32 v{t+j}, v{d+2*j}, v{d+2*j+1}")
                for st in range(2):
                    a(f"buffer_store_dwordx4 v[{t+4*st}:{t+4*st+3}], v{5 if tt else vL16}, s[{SWS}:{SWS+3}], s6 offen offset:{(sg-1)*2048 + st*1024} {mode}")
            if mode == "sc1": a("s_branch L_kvj")
        a("L_kvj:")
        for i, (tt, sg) in enumerate(((0,1), (0,2), (1,1), (1,2))):
            t = T + 8*i
            for st in range(2):
                a(f"ds_write_b128 v4, v[{t+4*st}:{t+4*st+3}] offset:{tt*4096 + (sg-1)*2048 + st*1024}")
        a(f"s_lshl_b32 s5, s{sW}, 11")
        a(f"s_add_u32 s5, s5, {QX}")
        a(f"v_add_u32 v5, s5, v{vL16}")
        for tt in (1, 0):
            d = acc(tt, 0); t = 80 if tt else Q0
            for j in range(8):
                a(f"v_pk_mul_f32 v[{d+2*j}:{d+2*j+1}], v[{d+2*j}:{d+2*j+1}], s[98:99]")
            for j in range(8):
                a(f"v_cvt_pk_bf16_f32 v{t+j}, v{d+2*j}, v{d+2*j+1}")
            if tt:
                a(f"ds_write_b128 v5, v[80:83]")
                a(f"ds_write_b128 v5, v[84:87] offset:1024")
        if not self.opt.get("fpre", 1):
            a("s_waitcnt lgkmcnt(0)")
            a("s_barrier")
            self.stamp("barE")
        a(f"s_lshl_b32 s5, s{sGP}, 4")
        a(f"s_add_u32 s5, s5, s{sMB}")
        a("s_lshl_b32 s5, s5, 2")
        a(f"s_add_u32 s5, s5, s{sW}")
        a("s_lshl_b32 s5, s5, 2")
        a(f"s_add_u32 s5, s5, {WS_FKV:#x}")
        a("v_mov_b32 v4, 0")
        a(f"v_mov_b32 v5, s{sNON}")
        a("s_cmp_eq_u64 s[96:97], 0")
        a("s_waitcnt vmcnt(0)")
        a("s_mov_b64 exec, 1")
        a("s_cbranch_scc1 L_floc")
        a(f"buffer_store_dword v5, v4, s[{SWS}:{SWS+3}], s5 offen sc1")
        a("s_branch L_flj")
        a("L_floc:")
        a(f"buffer_store_dword v5, v4, s[{SWS}:{SWS+3}], s5 offen")
        a("L_flj:")
        a("s_mov_b64 exec, -1")
        self.stamp("kvpub")
        if self.opt.get("fpre", 1):
            a("s_waitcnt lgkmcnt(0)")
            a("s_barrier")
            self.stamp("barE")

    def consumer16(self):
        a = self.a
        a.reset_q()
        a("L_cons:")
        self.late_srds()
        a("s_waitcnt lgkmcnt(0)")
        a(f"s_mov_b32 s{sA}, {WS_EPOCH:#x}")
        a("v_mov_b32 v4, 0")
        a(f"buffer_load_dword v36, v4, s[{SWS}:{SWS+3}], s{sA} offen sc1")
        if self.opt.get("ctouch", 1) == 1:
            self.code_touch("L_pcA", f"s_cmp_lg_u32 s{sW}, 0")
        XA, WA = 8, 12
        a("v_and_b32 v4, 15, v0")
        a("v_lshrrev_b32 v5, 4, v0")
        a("v_lshrrev_b32 v29, 1, v4")
        a(f"s_lshl_b32 s5, s{sTH}, 13")
        a("v_lshl_add_u32 v4, v4, 7, s5")
        for k2 in range(2):
            a(f"v_or_b32 v30, {4*k2}, v5")
            a("v_xor_b32 v30, v30, v29")
            a(f"v_lshl_add_u32 v{XA+k2}, v30, 4, v4")
            a(f"v_add_u32 v{XA+2+k2}, {2*STG}, v{XA+k2}")
        a("v_bfe_u32 v29, v0, 2, 2")
        a("v_lshl_add_u32 v4, v5, 3, v29")
        a("v_lshlrev_b32 v4, 7, v4")
        a("v_and_b32 v5, 1, v5")
        a("v_lshlrev_b32 v5, 1, v5")
        a("v_bfe_u32 v30, v0, 1, 1")
        a("v_or_b32 v5, v5, v30")
        a(f"s_lshl_b32 s5, s{sHH}, 2")
        a("v_or_b32 v5, s5, v5")
        a("v_lshrrev_b32 v29, 1, v29")
        a("v_lshlrev_b32 v29, 2, v29")
        a("v_xor_b32 v5, v5, v29")
        a("v_lshl_add_u32 v4, v5, 4, v4")
        a("v_and_b32 v5, 1, v0")
        a("v_lshl_add_u32 v4, v5, 3, v4")
        a(f"v_add_u32 v{WA}, 16384, v4")
        a(f"v_xor_b32 v{WA+1}, 32, v{WA}")
        a(f"v_add_u32 v{WA+2}, {2*STG}, v{WA}")
        a(f"v_add_u32 v{WA+3}, {2*STG}, v{WA+1}")
        self.p2_setup(40)
        a(f"s_lshl_b32 s81, s{sGP}, 7")
        a(f"s_add_u32 s81, s81, {WS_XC:#x}")
        a("v_and_b32 v37, 15, v0")
        a("v_lshlrev_b32 v37, 3, v37")
        a("v_mov_b32 v34, 0")
        a("v_mov_b32 v35, 0")
        a("v_and_b32 v4, 0x33, v0")
        a("v_bfe_u32 v5, v0, 2, 1")
        a("v_lshl_or_b32 v4, v5, 3, v4")
        a("v_bfe_u32 v5, v0, 3, 1")
        a("v_lshl_or_b32 v4, v5, 2, v4")
        a("v_lshlrev_b32 v38, 4, v4")
        FR = [40, 80]
        ACC = 128
        acc = lambda tb, fb: ACC + (tb*6 + fb) * 4
        def reads(n, k2, fs):
            buf = n % 4
            bo = (buf & 1) * STG
            hi = (buf >> 1) * 2
            f = FR[fs]
            x = lambda tb: f"ds_read_b128 v[{f+4*tb}:{f+4*tb+3}], v{XA+hi+k2} offset:{bo + tb*2048}"
            w = lambda fb, u: f"ds_read_b64_tr_b16 v[{f+16+4*fb+2*u}:{f+17+4*fb+2*u}], v{WA+hi+(fb & 1)} offset:{bo + (fb >> 1)*8192 + k2*4096 + u*512}"
            return [x(0), w(2,0), w(2,1), x(1), x(2), x(3)] + [w(fb, u) for fb in (3, 4, 5, 0, 1) for u in range(2)]
        def mfmas(fs):
            f = FR[fs]
            Ls = []
            for fb in (2, 3, 4, 5, 0, 1):
                for tb in range(4):
                    X, W_, d = f + 4*tb, f + 16 + 4*fb, acc(tb, fb)
                    Ls.append(mf16(d, W_, X, d) if fb < 4 else mf16(d, X, W_, d))
            return Ls
        if self.opt.get("mk0", 0):
            self.o_mark(False)
            for i in range(4): a(f"v_mov_b32 v{120-4+i-76}, -1")
            a("s_add_u32 s5, s73, 65536")
            for sr in (73, 5):
                for hf in range(2):
                    a(f"buffer_store_dwordx4 v[40:43], v{vL16}, s[{SWS}:{SWS+3}], s{sr} offen offset:{hf*1024} sc1")
        for i in range(96): a(f"v_mov_b32 v{ACC+i}, 0")
        a("s_mov_b32 s80, 0")
        a("s_barrier")
        self.stamp("bar0")
        if self.opt.get("clk"): self.stamp("rbar0", True)
        for i, r in enumerate(reads(0, 0, 0)):
            a(r)
            if i == 11: a("s_waitcnt lgkmcnt(4)")
        a("s_waitcnt lgkmcnt(0)")
        a.raw(".p2align 6")
        a("L_cl:")
        BPOS = self.opt.get("bpos16", 4)
        for n in range(4):
            for k2 in range(2):
                M = mfmas(k2)
                last = (n == 3 and k2 == 1)
                R = reads(n, 1, 1) if k2 == 0 else reads((n + 1) % 4, 0, 0)
                BP = BPOS if k2 == 1 else 0
                for i, m in enumerate(M):
                    if k2 == 1 and i == BP:
                        a.wait_ds_all()
                        if last:
                            a("s_cmp_eq_u32 s80, 3")
                            a("s_cbranch_scc1 L_cx")
                        self.dstamp(["s_lshl_b32 s101, s80, 2", f"s_add_u32 m0, s101, {33 + n}"])
                        a("s_barrier")
                    a(m)
                    if BP <= i < BP + 16:
                        if len(a.ds_q) >= 15: a(f"s_waitcnt lgkmcnt(14)")
                        a(R[i - BP])
            if n == 0:
                l1 = self.label("cj"); l2 = self.label("cj")
                q = (list(a.ds_q), list(a.vm_q))
                a("s_cmp_lg_u32 s80, 1")
                a(f"s_cbranch_scc1 {l1}")
                a("s_waitcnt vmcnt(0)")
                self.nonce(36)
                a(f"{l1}:")
                a("s_cmp_lg_u32 s80, 2")
                a(f"s_cbranch_scc1 {l2}")
                a(f"buffer_load_dwordx2 v[34:35], v37, s[{SWS}:{SWS+3}], s81 offen sc1")
                a(f"{l2}:")
                a.ds_q, a.vm_q = q[0], []
        a("s_add_u32 s80, s80, 1")
        a("s_waitcnt lgkmcnt(0)")
        a("s_branch L_cl")
        a("L_cx:")
        for m in mfmas(1)[BPOS:]: a(m)
        a("s_waitcnt vmcnt(0)")
        a(f"v_cmp_ne_u32 vcc, s{sXCC}, v34")
        a(f"v_cmp_ne_u32 s[96:97], s{sNON}, v35")
        a("s_nop 1")
        a("s_or_b64 s[96:97], vcc, s[96:97]")
        self.stamp("p1end")
        self.jitter(100)
        if self.opt.get("clk"): self.stamp("rp1end", True)
        a(f"s_lshl_b32 s6, s{sMB}, 15")
        a(f"s_add_u32 s6, s6, s{sKVB}")
        a(f"s_lshl_b32 s5, s{sHH}, 14")
        a(f"s_lshl_b32 s7, s{sTH}, 13")
        a("s_add_u32 s5, s5, s7")
        a("s_add_u32 s6, s6, s5")
        a(f"s_add_u32 s7, s6, 4096")
        a(f"s_add_u32 s5, s5, {RING[0]}")
        a(f"v_add_u32 v4, s5, v{vL16}")
        a("v_add_u32 v5, s5, v38")
        a(f"s_mov_b32 s98, {f2u(QSCALE):#x}")
        def pack(t, tt, sg, st):
            if sg < 2: src = [acc(2*tt, 2*sg + st), acc(2*tt + 1, 2*sg + st)]
            else: src = [acc(2*tt + st, 4), acc(2*tt + st, 5)]
            for k_, d in enumerate(src):
                if sg == 0:
                    for i in range(4): a(f"v_mul_f32 v{d+i}, s98, v{d+i}")
                for i in range(2):
                    a(f"v_cvt_pk_bf16_f32 v{t+2*k_+i}, v{d+2*i}, v{d+2*i+1}")
        def swap(t):
            a(f"v_permlane16_swap_b32 v{t}, v{t+2}")
            a(f"v_permlane16_swap_b32 v{t+1}, v{t+3}")
        T = 48
        KV = [(tt, sg, st) for tt in range(2) for sg in (1, 2) for st in range(2)]
        if self.opt.get("noloc"): a("s_mov_b64 s[96:97], -1")
        def kvout(mode):
            pack(T, *KV[0])
            for i, (tt, sg, st) in enumerate(KV):
                t = T + 4*i
                if i + 1 < 8: pack(t + 4, *KV[i + 1])
                else: a("s_nop 1")
                swap(t)
                a(f"buffer_store_dwordx4 v[{t}:{t+3}], v{38 if sg == 1 else vL16}, s[{SWS}:{SWS+3}], s{7 if tt else 6} offen offset:{(sg-1)*2048 + st*1024} {mode}")
        def kvglob():
            kvout("sc1")
            a("s_branch L_kvj")
        self.ool(["s_cmp_lg_u64 s[96:97], 0", "s_cbranch_scc1"], kvglob)
        kvout("")
        a("L_kvj:")
        for i, (tt, sg, st) in enumerate(KV):
            t = T + 4*i
            a(f"ds_write_b128 v{5 if sg == 1 else 4}, v[{t}:{t+3}] offset:{tt*4096 + (sg-1)*2048 + st*1024}")
        a(f"s_lshl_b32 s5, s{sW}, 11")
        a(f"s_add_u32 s5, s5, {QX}")
        a(f"v_add_u32 v5, s5, v{vL16}")
        pack(80, 1, 0, 0); pack(84, 1, 0, 1); swap(80); pack(Q0, 0, 0, 0); swap(84)
        a(f"ds_write_b128 v5, v[80:83]")
        a(f"ds_write_b128 v5, v[84:87] offset:1024")
        pack(Q1, 0, 0, 1); swap(Q0); a("s_nop 0"); swap(Q1)
        if not self.opt.get("fpre", 1):
            a("s_waitcnt lgkmcnt(0)")
            a("s_barrier")
            self.stamp("barE")
        a(f"s_lshl_b32 s5, s{sGP}, 4")
        a(f"s_add_u32 s5, s5, s{sMB}")
        a("s_lshl_b32 s5, s5, 2")
        a(f"s_add_u32 s5, s5, s{sW}")
        a("s_lshl_b32 s5, s5, 2")
        a(f"s_add_u32 s5, s5, {WS_FKV:#x}")
        a("v_mov_b32 v4, 0")
        a(f"v_mov_b32 v5, s{sNON}")
        a("s_waitcnt vmcnt(0)")
        a("s_mov_b64 exec, 1")
        def flglob():
            a(f"buffer_store_dword v5, v4, s[{SWS}:{SWS+3}], s5 offen sc1")
            a("s_branch L_flj")
        self.ool(["s_cmp_lg_u64 s[96:97], 0", "s_cbranch_scc1"], flglob)
        a(f"buffer_store_dword v5, v4, s[{SWS}:{SWS+3}], s5 offen")
        a("L_flj:")
        a("s_mov_b64 exec, -1")
        self.stamp("kvpub")
        if self.opt.get("fpre", 1):
            a("s_waitcnt lgkmcnt(0)")
            a("s_barrier")
            self.stamp("barE")

    def rd(self, dst, t, part):
        c, kt = divmod(t, 4)
        base = RING[c % 4]
        v, off = {0: (vRLO, 0), 32*KB: (vRLO, 32*KB), 64*KB: (vRMID, 0), 128*KB: (vRHI, 0)}[base]
        return f"ds_read_b128 v[{dst}:{dst+3}], v{v} offset:{off + kt*4096 + part*1024}"

    def kv_addr(self, ci):
        return [f"s_add_u32 s{sA}, s{sMB}, {ci}", f"s_and_b32 s{sA}, s{sA}, 15", f"s_lshl_b32 s{sA}, s{sA}, 15",
                f"s_add_u32 s{sA}, s{sA}, s{sKVB}"]
    def kv_dma(self, ci, j):
        return [f"s_add_u32 m0, s{sW4K}, {RING[ci % 4]}", "s_nop 0",
                (f"buffer_load_dwordx4 v{vDMA}, s[{SWS}:{SWS+3}], s{sA} offen offset:{j*1024} {self.opt.get('kvfl', 'sc1')} lds", ('kv', ci))]

    def tile(self, t, first, last, zero, prio, extra, kread=True):
        rd = self.rd
        s = S[t & 1]; sn = S[(t + 1) & 1]
        e = lambda i: f"v_exp_f32 v{s+i}, v{s+i}"
        c = lambda i: f"v_cvt_pk_bf16_f32 v{P+i}, v{s+2*i}, v{s+2*i+1}"
        c7p = [] if first else [f"v_cvt_pk_bf16_f32 v{P+7}, v{sn+14}, v{sn+15}"]
        pv1p = [] if first else [mf32(O, V+4, P+4, O)]
        l1p = [] if first else [mf16(L, SEL, P+4, L)]
        exp_ = self.opt.get("exp", "")
        qk0 = [] if last else [mf32(sn, K, Q0, "0" if "c0" in exp_ else NEGM)]
        qk1 = [] if last else [mf32(sn, K+4, Q1, sn)]
        pv0 = [mf32(O, V, P, "0" if zero else O)]
        l0 = [mf16(L, SEL, P, "0" if zero else L)]
        if "smf" in exp_:
            l1p = [] if first else [f"v_smfmac_f32_16x16x64_bf16 v[{L}:{L+3}], v[{SEL}:{SEL+3}], v[{P}:{P+7}], v{vONE}"]
            l0 = []
        if "nosum" in exp_: l1p = []; l0 = []
        v1r = [rd(V+4, t, 3)]
        kr = [rd(K, t+2, 0), rd(K+4, t+2, 1)] if kread else []
        v0r = [] if last else [rd(V, t+1, 2)]
        if "halfds" in exp_ and t & 1: kr = []; v0r = []; v1r = []
        pr = [f"s_setprio {prio}"] if prio is not None else []
        x = lambda i: extra.get(i, [])
        X = (pr + x(-1) + [e(0)] + c7p + [e(1), e(2), "s_waitcnt lgkmcnt(0)"] + x(3) + pv1p + v1r + [e(3), c(0), e(4), e(5)] + l1p + x(0) + [c(1), e(6)] + qk0 +
             [e(7), c(2), e(8), c(3)] + qk1 + kr + [e(9), e(10), e(11)] + pv0 + v0r + [c(4), e(12), e(13), c(5)] + l0 + x(1) +
             [e(14), e(15), c(6)] + x(2))
        if self.opt.get("smf", 1):
            smf = f"v_smfmac_f32_16x16x64_bf16 v[{L}:{L+3}], v[{SEL}:{SEL+3}], v[{P}:{P+7}], v127"
            sm = [] if first else [smf]
            def Wt():
                a_ = self.a; q = a_.ds_q
                k = [i for i, e_ in enumerate(q) if ('v', V) in e_[1]]
                if self.opt.get("w1", 0) and k and not any(e_[0] == 'smem' for e_ in q): a_(f"s_waitcnt lgkmcnt({len(q) - k[-1]})")
                else: a_("s_waitcnt lgkmcnt(0)")
            X = (pr + x(-1) + [e(0)] + c7p + [e(1), e(2), Wt] + x(3) + sm + [e(3)] + pv1p + v1r + [c(0), e(4), e(5), c(1)] + x(0) + qk0 +
                 [e(6), e(7), c(2), e(8)] + qk1 + kr + [c(3), e(9), e(10), e(11)] + pv0 + v0r + [c(4), e(12), e(13), c(5)] + x(1) +
                 [e(14), e(15), c(6)] + x(2))
            tv = self.opt.get("tv", 0)
            W_ = ["s_waitcnt lgkmcnt(0)"]
            if tv == 1:
                X = (pr + x(-1) + [e(0)] + c7p + [e(1), e(2)] + W_ + x(3) + pv1p + v1r + [e(3), e(4), e(5)] + sm + [c(0), c(1)] + x(0) + [e(6)] + qk0 +
                     [e(7), c(2), e(8), c(3)] + qk1 + kr + [e(9), e(10), e(11)] + pv0 + v0r + [c(4), e(12), e(13), c(5)] + x(1) +
                     [e(14), e(15), c(6)] + x(2))
            if tv == 2:
                X = (pr + x(-1) + [e(0)] + c7p + [e(1), e(2)] + W_ + x(3) + sm + [e(3)] + pv1p + v1r + [c(0), e(4), e(5), c(1), e(6)] + x(0) + qk0 +
                     [e(7), c(2), e(8), c(3), e(9)] + qk1 + kr + [e(10), e(11), c(4), e(12)] + pv0 + v0r + [e(13), c(5)] + x(1) +
                     [e(14), e(15), c(6)] + x(2))
            if tv == 3:
                X = (pr + x(-1) + qk0 + [e(0)] + c7p + [e(1), e(2)] + W_ + x(3) + sm + [e(3)] + pv1p + v1r + [c(0), e(4), e(5), c(1), e(6)] + x(0) + qk1 + kr +
                     [e(7), c(2), e(8), c(3), e(9), e(10)] + pv0 + v0r + [e(11), c(4), e(12), e(13), c(5)] + x(1) +
                     [e(14), e(15), c(6)] + x(2))
            if tv == 4:
                p2 = [f"s_setprio {(prio + 2) & 3}"] if prio is not None else []
                X = X[:]
            if last:
                X += ["s_nop 0", f"v_cvt_pk_bf16_f32 v{P+7}, v{s+14}, v{s+15}", "s_nop 1", smf, mf32(O, V+4, P+4, O)]
        elif last:
            X += ["s_nop 0", f"v_cvt_pk_bf16_f32 v{P+7}, v{s+14}, v{s+15}", "s_nop 1", mf32(O, V+4, P+4, O), mf16(L, SEL, P+4, L)]
        emit(self.a, X)

    def arrive(self):
        self.ncnt = getattr(self, "ncnt", 0) + 8
        return [f"ds_add_u32 v{vCNTA}, v{vONE}"]

    def cnt_wait(self, vt):
        a = self.a
        tgt = self.ncnt
        def slow():
            l0 = self.label("cw"); l1 = self.label("cwd")
            if getattr(a, 'accw', None): a("s_memtime s[84:85]")
            for x in [f"s_mov_b32 s6, {SPIN}", f"{l0}:", f"ds_read_b32 v{vt}, v{vCNTA}", "s_waitcnt lgkmcnt(0)",
                      f"v_readfirstlane_b32 s5, v{vt}", "s_nop 3", f"s_cmp_ge_u32 s5, {tgt}", f"s_cbranch_scc1 {l1}",
                      "s_sub_u32 s6, s6, 1", "s_cmp_lg_u32 s6, 0", f"s_cbranch_scc1 {l0}", f"{l1}:"]: a(x)
            if getattr(a, 'accw', None):
                a("s_memtime s[86:87]"); a("s_waitcnt lgkmcnt(0)"); a("s_sub_u32 s86, s86, s84"); a("s_add_u32 s91, s91, s86")
        return [f"v_readfirstlane_b32 s5, v{vt}"], [lambda: self.ool([f"s_cmp_lt_u32 s5, {tgt}", "s_cbranch_scc1"], slow)]

    def tagchk(self, T, n, t0, t1):
        a = self.a
        a(f"v_min_u32 v{t0}, v{T+1}, v{T+3}")
        a(f"v_max_u32 v{t1}, v{T+1}, v{T+3}")
        for i in range(1, n // 2):
            a(f"v_min3_u32 v{t0}, v{t0}, v{T+4*i+1}, v{T+4*i+3}")
            a(f"v_max3_u32 v{t1}, v{t1}, v{T+4*i+1}, v{T+4*i+3}")
        a(f"v_cmp_ne_u32 vcc, s{sNON}, v{t0}")
        a(f"v_cmp_ne_u32 s[98:99], s{sNON}, v{t1}")
        a("s_nop 1")
        a("s_or_b64 vcc, vcc, s[98:99]")
        a("s_cmp_eq_u64 vcc, 0")

    def hp_store(self, AC):
        a = self.a
        a("v_lshlrev_b32 v4, 3, v0")
        a(f"v_mov_b32_dpp v{AC+2}, v{AC} quad_perm:[1,1,3,3] row_mask:0xf bank_mask:0xf")
        a(f"v_mov_b32 v{AC+1}, s{sNON}")
        a(f"v_mov_b32 v{AC+3}, s{sNON}")
        a("s_mov_b64 exec, 0x55555555")
        a(f"buffer_store_dwordx4 v[{AC}:{AC+3}], v4, s[{SWS}:{SWS+3}], s44 offen sc1")
        a("s_mov_b64 exec, -1")

    HT_ = 224
    def h_ld(self):
        a = self.a
        T = self.HT_
        a(f"s_mov_b32 s5, {WS_HP:#x}")
        for i in range(16):
            a(f"buffer_load_dwordx2 v[{T+2*i}:{T+2*i+1}], v122, s[{SWS}:{SWS+3}], s5 offen sc1")
            if i < 15: a(f"s_add_u32 s5, s5, {3584*8}")
    def wo_ld(self, i):
        pos, k_ = divmod(i, 8)
        pre = []
        if k_ == 0: pre = [f"s_bfe_u32 s5, s85, {0x20000 + 2*pos:#x}", "s_lshl_b32 s5, s5, 13", "s_add_u32 s79, s82, s5"]
        if k_ == 4: pre = ["s_add_u32 s79, s79, 4096"]
        dst = WOF + 4*i
        return pre + [f"buffer_load_dwordx4 v[{dst}:{dst+3}], v{vL16}, s[{SWS}:{SWS+3}], s79 offen offset:{(k_ % 4)*1024} {self.opt.get('ofl', 'sc1')}"]

    def h_dma(self):
        L = ["s_lshl_b32 s6, s77, 1", f"s_add_u32 m0, s6, {stg_slot(0)}", f"s_add_u32 s7, s48, {3584*8 - 1024}",
             (f"buffer_load_dwordx4 v{vL16}, s[{SWS}:{SWS+3}], s48 offen sc1 lds", 'h'),
             (f"buffer_load_dwordx4 v{vL16}, s[{SWS}:{SWS+3}], s7 offen offset:1024 sc1 lds", 'h')]
        return L
    def h_finish(self):
        a = self.a
        T = self.HT_
        def body():
            l2 = self.label("hok")
            a(f"v_subrev_u32 v30, {SCR_H}, v121")
            a(f"v_lshlrev_b32 v30, 2, v30")
            a(f"v_add_u32 v30, {stg_slot(0)}, v30")
            for i in range(16):
                a(f"ds_read_b64 v[{T+2*i}:{T+2*i+1}], v30 offset:{i*1024}")
                if i == 7: a("s_waitcnt lgkmcnt(0)")
            a("s_waitcnt lgkmcnt(0)")
            self.tagchk(T, 16, 30, 31)
            a(f"s_cbranch_scc1 {l2}")
            self.spin(self.h_ld, lambda: self.tagchk(T, 16, 30, 31), 7, sleep=12)
            a(f"{l2}:")
            for i in range(1, 8):
                for m in range(2):
                    b = T + 16*m
                    a(f"v_add_f32 v{b}, v{b}, v{b+2*i}")
            for m in range(2): round_bf16(a, T + 16*m)
            a(f"v_mov_b32 v{T+1}, v{T}")
            sigmoid(a, T+1)
            a(f"v_mul_f32 v{T}, v{T}, v{T+1}")
            round_bf16(a, T)
            a(f"v_mul_f32 v{T}, v{T}, v{T+16}")
            a(f"v_cvt_pk_bf16_f32 v{T}, v{T}, v{T}")
            a(f"ds_write_b16 v121, v{T}")
            a("s_waitcnt lgkmcnt(0)")
        self.ool([f"s_cmp_lt_u32 s{sW}, 2", "s_cbranch_scc1"], body, name="hf")

    def yp_store(self, AC):
        a = self.a
        a("v_lshlrev_b32 v4, 3, v0")
        a(f"v_mov_b32_dpp v{AC+2}, v{AC} quad_perm:[1,1,3,3] row_mask:0xf bank_mask:0xf")
        a(f"v_mov_b32 v{AC+1}, s{sNON}")
        a(f"v_mov_b32 v{AC+3}, s{sNON}")
        a("s_mov_b64 exec, 0x55555555")
        a(f"buffer_store_dwordx4 v[{AC}:{AC+3}], v4, s[{SWS}:{SWS+3}], s45 offen sc1")
        a("s_mov_b64 exec, -1")

    def kv_ld(self):
        self.a(f"buffer_load_dword v30, v31, s[{SWS}:{SWS+3}], s83 offen sc1")
    def kv_first(self):
        a = self.a
        a(f"s_lshl_b32 s83, s{sGP}, 8")
        a(f"s_add_u32 s83, s83, {WS_FKV:#x}")
        a("v_lshlrev_b32 v31, 2, v0")
        a("s_mov_b32 s76, 0")
        self.kv_ld()
        a.vm_q = []
    def kv_try(self, block):
        a = self.a
        def chk():
            a(f"v_cmp_ne_u32 vcc, s{sNON}, v30")
            a("s_nop 1")
            a("s_cmp_eq_u64 vcc, 0")
        def fetch(ci):
            emit(a, self.kv_addr(ci))
            for j in range(4):
                emit(a, self.kv_dma(ci, j)[(0 if j == 0 else 2):])
        def body():
            l = self.label("kvno"); l2 = self.label("kvok"); l3 = self.label("kvc2")
            a("s_cmp_eq_u32 s76, 1")
            a(f"s_cbranch_scc1 {l3}")
            a("s_waitcnt vmcnt(0)")
            chk()
            a(f"s_cbranch_scc1 {l2}")
            if block:
                self.spin(self.kv_ld, chk, 7, sleep=1)
            else:
                self.kv_ld()
                a(f"s_branch {l}")
            a(f"{l2}:")
            self.stamp("kvseen")
            a("s_mov_b32 s76, 1")
            fetch(1)
            if not block: a(f"s_branch {l}")
            a(f"{l3}:")
            a("s_mov_b32 s76, 2")
            fetch(2)
            self.stamp("kvi2")
            a(f"{l}:")
        self.ool(["s_cmp_lt_u32 s76, 2", "s_cbranch_scc1"], body)

    def wstep(self, j, kind, i, slot):
        opt = self.opt
        if kind == 'a':
            pre = [f"s_mov_b32 s{sB}, {i*16*7168}"]
            ld_ = f"buffer_load_dwordx4 v{vWA}, s[{SWA}:{SWA+3}], s{sB} offen {opt.get('afl', 'nt')} lds"
            dst = 200
        else:
            pre = [f"s_mov_b32 s{sB}, {i*16*2048}"]
            ld_ = f"buffer_load_dwordx4 v{vWOD}, s[{SWO}:{SWO+3}], s{sB} offen {opt.get('wofl', '')} lds"
            dst = WOF + 4*i
        iss = [f"s_add_u32 m0, s77, {slot}"] + pre + [(ld_, ('w', j))]
        rdl = [('WAITVM', ('w', j), 88 if kind == 'o' else 89)] + [f"ds_read_b64_tr_b16 v[{dst+2*u}:{dst+2*u+1}], v{vWOT} offset:{slot - 96*KB + u*512}" for u in range(2)]
        return iss, rdl, dst

    def touch(self, kind, i):
        a = self.a
        def body():
            if kind == 'o':
                a(f"s_and_b32 s5, s{sRT}, 3")
                a(f"s_add_u32 s5, s5, {4*i}")
                a("s_lshl_b32 s5, s5, 15")
                a(f"buffer_load_dword v125, v127, s[{SWO}:{SWO+3}], s5 offen")
            elif kind == 'a':
                a(f"s_mov_b32 s5, {i*32*7168}")
                a(f"buffer_load_dword v125, v127, s[{SWA}:{SWA+3}], s5 offen nt")
            else:
                a(f"s_mul_i32 s5, s{sRT}, {112*2048}")
                if i: a(f"s_add_u32 s5, s5, {i*65536}")
                a(f"buffer_load_dword v125, v127, s[{SWD}:{SWD+3}], s5 offen nt")
        if kind == 'a': cond = [f"s_and_b32 s5, s{sW}, 3", "s_cmp_eq_u32 s5, 1", "s_cbranch_scc1"]
        else: cond = [f"s_cmp_eq_u32 s{sW}, {2 if kind == 'o' else 6}", "s_cbranch_scc1"]
        self.ool(cond, body)

    def d_dma(self, i, slot):
        return [f"s_add_u32 m0, s77, {slot}", f"s_add_u32 s{sB}, s46, {i*16*2048}",
                (f"buffer_load_dwordx4 v{vWDD}, s[{SWD}:{SWD+3}], s{sB} offen {self.opt.get('afl', 'nt')} lds", ('d', i))]

    def phase2(self):
        a = self.a
        rd = self.rd
        opt = self.opt
        a.reset_q()
        a.ds_q = [('ds', set([('v', i) for i in range(Q0, Q0+8)]), None)]
        a("L_p2:")
        self.p2mark = a.vm_total
        if self.timing and opt.get("acc"):
            a.accw = True
            for r in (88, 89, 90, 91): a(f"s_mov_b32 s{r}, 0")
        for x in (rd(K, 0, 0), rd(K+4, 0, 1), rd(V, 0, 2)): a(x)
        a(f"v_mov_b32 v4, {SCR_IDX}")
        a(f"ds_read_b32 v{P+2}, v4 offset:8")
        a("s_waitcnt lgkmcnt(0)")
        a(mf32(S[0], K, Q0, "0"))
        a(mf32(S[0], K+4, Q1, S[0]))
        a(f"v_readfirstlane_b32 s{sNON}, v{P+2}")
        a("s_nop 10")
        rowmax(a, S[0], 4, 5)
        crosshalf_max(a, 4, 5)
        if opt.get("force_fb"):
            a("v_add_f32 v4, 0xc3480000, v4")
        for i in range(16):
            a(f"v_sub_f32 v{NEGM+i}, 0, v4")
        a("s_nop 1")
        a(mf32(S[0], K, Q0, NEGM))
        a(mf32(S[0], K+4, Q1, S[0]))
        a(rd(K, 1, 0)); a(rd(K+4, 1, 1))
        a("s_nop 9")
        ex = {t: {} for t in range(64)}
        strip = opt.get("strip", "")
        grp = [""]
        def add(t, pos, Ls):
            if grp[0] and grp[0] in strip: return
            ex[t].setdefault(pos, []).extend(Ls)
        grp[0] = "K"
        if opt.get("c3d", 1):
            add(4, 0, self.kv_dma(3, 0)); add(4, 1, self.kv_dma(3, 1)[2:]); add(4, 2, self.kv_dma(3, 2)[2:]); add(5, 3, self.kv_dma(3, 3)[2:])
        else:
            add(4, 0, self.kv_dma(3, 0)); add(4, 1, self.kv_dma(3, 1)); add(5, 0, self.kv_dma(3, 2)); add(5, 1, self.kv_dma(3, 3))
        for c in range(1, 13):
            ci = c + 3
            add(4*c + 1, 2, ["s_add_u32 s50, s50, 32768", "s_and_b32 s50, s50, 0x7ffff", f"s_or_b32 s{sA}, s50, s{sKVB}"] +
                ([f"s_add_u32 m0, s{sW4K}, {RING[ci % 4]}"] if 4*c + 2 != opt.get('h_issue', opt.get("h_fin", 46) - 4) else []))
            for j in range(4):
                if opt.get("kvd", 1): add(4*c + 2 + opt.get("kvt_", [0, 0, 1, 1])[j], opt.get("kvp", [1, 2, 3, 1])[j], self.kv_dma(ci, j)[(0 if j == 0 and 4*c + 2 == opt.get('h_issue', opt.get("h_fin", 46) - 4) else 2):])
                elif opt.get("earr", 1): add(4*c + 2 + [0, 1, 1, 2][j], [1, 0, 1, 1][j], self.kv_dma(ci, j))
                else: add(4*c + 2 + j, 1, self.kv_dma(ci, j))
        grp[0] = "W"
        WFA, XFA, ACA = 200, 232, 240
        A0, AD, LA = opt.get("a0", 8), opt.get("ad", 2), opt.get("lat_a", 4)
        HFIN = opt.get("h_fin", 46)
        HI = opt.get('h_issue', HFIN - 4)
        assert HFIN % 4 == 2
        BT = (HFIN // 4 + 1) * 4 + 3
        XV0 = opt.get("xv0", 15)
        assert XV0 % 4 == 3
        C0 = opt.get("cvt0", 5)
        grp[0] = "C"
        add(C0, 0, [f"s_add_u32 m0, s77, {stg_slot(0)}", f"s_lshl_b32 s{sB}, s{sRT}, 15",
                    (f"buffer_load_dwordx4 v{vWOD}, s[{SWO}:{SWO+3}], s{sB} offen {opt.get('afl', 'nt')} lds", 'wc')])
        add(C0 + 4, 3, [('WAITVM', 'wc')] + [f"ds_read_b64_tr_b16 v[{WFA+2*u}:{WFA+2*u+1}], v{vWOT} offset:{stg_slot(0) - 96*KB + u*512}" for u in range(2)])
        add(C0 + 5, 0, [f"s_add_u32 s5, s47, s{sRT}", "s_lshl_b32 s6, s5, 10", f"s_add_u32 s6, s6, {WS_WT:#x}",
                        (f"buffer_store_dwordx4 v[{WFA}:{WFA+3}], v{vL16}, s[{SWS}:{SWS+3}], s6 offen sc1", 'ws')])
        add(C0 + 8, 0, [f"s_add_u32 s5, s47, s{sRT}", "s_lshl_b32 s5, s5, 2", f"s_add_u32 s5, s5, {WS_FW:#x}",
                        "v_mov_b32 v4, 0", f"v_mov_b32 v5, s{sNON}", ('WAITVM', 'ws'), "s_mov_b64 exec, 1",
                        f"buffer_store_dword v5, v4, s[{SWS}:{SWS+3}], s5 offen sc1", "s_mov_b64 exec, -1"])
        W0 = opt.get("w0", 36)
        F0 = W0 - 3 if opt.get("ord", 1) else W0 - 1
        def fw_ld(): a(f"buffer_load_dword v30, v31, s[{SWS}:{SWS+3}], s83 offen sc1")
        def fw_chk():
            a(f"v_cmp_ne_u32 vcc, s{sNON}, v30"); a("s_nop 1"); a("s_cmp_eq_u64 vcc, 0")
        add(F0 - 3, 0, ["v_and_b32 v31, 31, v0", "v_lshlrev_b32 v31, 2, v31", "s_lshl_b32 s83, s47, 2", f"s_add_u32 s83, s83, {WS_FW:#x}", fw_ld])
        add(F0, 3, [f"v_cmp_ne_u32 vcc, s{sNON}, v30"])
        add(F0, 0, [lambda: self.ool(["s_cmp_lg_u64 vcc, 0", "s_cbranch_scc1"], lambda: self.spin(fw_ld, fw_chk, 7, sleep=32)),
                    "s_lshl_b32 s82, s47, 10", f"s_add_u32 s82, s82, {WS_WT:#x}"])
        grp[0] = "W"
        DF, HF, ACB = 208, 224, 240
        free = [C0 + 5, 0, 0]; lastA = None; tl = []; steps = []
        LD = opt.get("lat_d", 4)
        used = {C0}
        def cold(t):
            if opt.get("kvd", 1):
                if opt.get("burst"):
                    while t % 4 != 0: t += 1
                else:
                    while t % 4 not in (0, 1) or t in used: t += 1
            used.add(t)
            return t
        def dsteps():
          g0 = grp[0]; grp[0] = "D" if "D" in strip else "M"
          for i in range(4):
            sl = min(range(3), key=lambda q_: free[q_])
            t = cold(max(free[sl], opt.get("d0", 26) + [0, 2, 4, 5][i]))
            add(t, 0, self.d_dma(i, stg_slot(sl)))
            add(t + LD, 3, [('WAITVM', ('d', i))] + [f"ds_read_b64_tr_b16 v[{DF+4*i+2*u}:{DF+4*i+2*u+1}], v{vWOT} offset:{stg_slot(sl) - 96*KB + u*512}" for u in range(2)])
            free[sl] = t + LD + 1; tl.append(t); steps.append(('d', i))
          grp[0] = g0
        if opt.get("d0", 26) < A0: dsteps()
        for i in range(8):
            sl = min(range(3), key=lambda q_: free[q_])
            t = max(free[sl], A0 + AD * i, 0)
            t = cold(t)
            iss, rdl, dst = self.wstep(i, 'a', i, stg_slot(sl))
            tr = max(t + LA, lastA + 1 if lastA else XV0)
            free[sl] = tr + 1; tl.append(t); steps.append(('a', i))
            if "A" not in strip: add(t, opt.get("apos", 0), iss)
            add(tr, 3, rdl)
            add(tr - 1, 1, [f"buffer_load_dwordx2 v[{XFA+4*(i&1)+2*u}:{XFA+4*(i&1)+2*u+1}], v123, s[{SX}:{SX+3}], s97 offen offset:{32*i + 16*u}" for u in range(2)])
            add(tr + 1, 2, [mf32(ACA, XFA + 4*(i & 1), dst, "0" if i == 0 else ACA)])
            lastA = tr + 1
        if opt.get("d0", 26) >= A0: dsteps()
        t = W0
        NP2 = opt.get("np2", 24)
        for i in range(NP2):
            dst = WOF + 4*i
            if dst + 3 >= WFA: t = max(t, lastA + 2)
            if dst >= 208: t = max(t, BT + 6)
            if opt.get("ocl", 0):
                while t % 4 not in (0, 1) and t < 52: t += 1
            assert t <= 63
            if "O" not in strip: add(t, opt.get("opos", 2) if not (opt.get("ocl", 0) and i & 1 == 0 and t < 52) else 1, self.wo_ld(i))
            if opt.get("ocl", 0) and t < 52:
                tl.append(t); steps.append(('o', i)); t += i & 1; continue
            tl.append(t); steps.append(('o', i)); t += 0 if (i >= opt.get("odense", 99) and i & 1 == 0) else 1
        self.wlate = []; self.wj = 8
        TA = 0
        grp[0] = "M"
        add(lastA + 1, 2, [lambda: self.hp_store(ACA)])
        if "H" not in strip: add(HI, 0, self.h_dma()); add(HFIN, 2, [self.h_finish])
        self.h_arrive = HFIN - 2
        assert max(free) <= HI - 2 and lastA + 2 <= HFIN
        for i in range(4):
            add(BT + i - 1, 2, [f"ds_read2_b64 v[{HF+4*i}:{HF+4*i+3}], v124 offset0:{4*i} offset1:{4*i+2}"])
            add(BT + i, 1, [mf32(ACB, HF+4*i, DF+4*i, "0" if i == 0 else ACB)])
        add(BT + 4, 2, [lambda: self.yp_store(ACB)])
        grp[0] = ""
        if not opt.get("ppoll", 0):
            add(0, -1, [self.kv_first])
            for t_, p_ in opt.get("tries", [[0, 2], [1, 2], [2, 2]]): add(t_, p_, [lambda: self.kv_try(False)])
        grp[0] = "M"
        if "Z" not in strip: add(opt.get("sw1", 4), 2, [self.sweep1]); add(opt.get("sw1", 4) + 2, 2, [self.sweep2])
        add(XV0 - 4, 1, [lambda: self.idx_get(0)]); add(XV0 - 1, 3, [lambda: self.idx_get(1)]); add(XV0 - 1, 0, [lambda: self.idx_get(2)])
        grp[0] = ""
        MK = opt.get("mark_at", 17)
        if "N" not in strip and not opt.get("mk1", 0): add(MK, 1, [self.o_mark])
        if opt.get("ord", 1):
            add(MK + 4, 2, ["s_memrealtime s[88:89]"])
            add(W0 - 11, 1, [self.ord_ld]); add(W0 - 8, 1, [self.ord_key])
            for (t_, p_), part in zip(((8, 2), (7, 3), (7, 1), (7, 2), (6, 1), (6, 2)), self.ord_parts()): add(W0 - t_, p_, part)
            add(W0 - 2, 2, [f"s_and_b32 s5, s{sW}, 4", "s_lshl_b32 s5, s5, 2", f"s_add_u32 s5, s5, {SCR_CNT + 48}", "v_mov_b32 v4, s5", "ds_read_b32 v5, v4"])
            add(W0 - 1, 3, ["v_readfirstlane_b32 s85, v5", "v_xor_b32 v4, 16, v4", "ds_read_b32 v5, v4"])
            add(W0, 3, ["v_readfirstlane_b32 s91, v5"])
        else:
            add(MK + 4, 2, ["s_mov_b32 s88, 0", f"s_lshr_b32 s5, s{sGP}, 1", "s_and_b32 s5, s5, 3", "s_lshl_b32 s5, s5, 3",
                            "s_lshr_b32 s85, 0xe4934e39, s5", "s_and_b32 s85, s85, 0xff", "s_mov_b32 s91, s85"])
        add(MK + 5, 1, [self.o_mark2])
        add(52, 1, [self.o_setup])
        add(56, 1, [self.o_spec])
        if opt.get("gate", 0):
            G = opt.get("gate")
            add(G, 1, ["s_mov_b32 s90, 3", lambda: self.fl_ld(125)])
            add(G + 2, 0, [lambda: self.g_try(0)])
            add(G + 2, 2, [lambda: self.g_try(1), lambda: setattr(self, "gmark", a.vm_total)])
        SP = opt.get("spec2", 0)
        if SP:
            for k_, g in enumerate(self.o_dma(0)): add(SP + k_ // 2, k_ & 1, g)
            add(63, 3, [f"s_add_u32 s5, s84, {self.OREG[0]}", f"v_add_u32 v121, s5, v{vL16}", ('WAITVM', ('o', 0))] +
                [f"ds_read_b32 v{[122, 123, 124, 5][k_]}, v121 offset:{(k_ >> 1)*8192 + (k_ & 1)*1024}" for k_ in range(4)])
            def again():
                for g in self.o_dma(0): emit(a, g)
            add(63, 1, ["v_max3_u32 v122, v122, v123, v124", "v_max_u32 v122, v122, v5", "v_cmp_eq_u32 vcc, -1, v122"])
            add(63, 2, [lambda: self.ool(["s_cmp_lg_u64 vcc, 0", "s_cbranch_scc1"], again), lambda: setattr(self, "spmark", a.vm_total)])
        for pos in range(1 if SP else 0, 2):
            for k_, g in enumerate(self.o_dma(pos)):
                t_ = opt.get("od0", 64) + 2*pos + k_ // 2
                if t_ <= 63: add(t_, k_ & 1, g)
                else: self.od_late = getattr(self, "od_late", []) + [g]
        XD = opt.get("xd", 53)
        for k_ in range(2):
            pre = [f"s_add_u32 s78, s49, {32768*k_}"]
            add(XD + k_, 1, [f"s_add_u32 m0, s77, {stg_slot(k_)}"] + pre + [(f"buffer_load_dwordx4 v{vWDD}, s[{SX}:{SX+3}], s78 offen lds", 'xd')])
        add(59, 2, [self.xg_addr])
        self.wsteps = list(zip(steps, tl))
        for t in range(64):
            c, kt = divmod(t, 4)
            if opt.get("rolltest"):
                if t == 8:
                    a("s_mov_b32 s83, 0"); a("L_rt:")
                if t == 24:
                    a("s_add_u32 s83, s83, 1"); a("s_cmp_lt_u32 s83, 3"); a("s_cbranch_scc1 L_rt")
                if 24 <= t < 56: continue
            if t == 4:
                self.stamp("own")
                if opt.get("ppoll", 0): a.lines.append(f"    s_waitcnt vmcnt({8 + a.vm_total - self.p2mark})")
                else:
                    self.kv_try(True)
                    assert not a.vm_q
                    self.p2mark = a.vm_total
                    if opt.get("mk1", 0): self.o_mark()
                    a.lines.append(f"    s_waitcnt vmcnt({4 + a.vm_total - self.p2mark})")
                self.stamp("c1land")
                a("s_barrier")
                self.stamp("barS")
                if opt.get("clk"): self.stamp("rbarS", True)
                if opt.get("idle"): a(f"s_sleep {opt['idle']}")
                if opt.get("late2"):
                    a(f"s_and_b32 s5, s2, {opt['late2'][0]}")
                    a(f"s_cmp_lg_u32 s5, {opt['late2'][1]}")
                    a("s_cbranch_scc1 L_nl2")
                    for _ in range(opt['late2'][2]): a("s_sleep 127")
                    a("L_nl2:")
                a(rd(K, 4, 0)); a(rd(K+4, 4, 1)); a(rd(V, 4, 2))
                emit(a, self.kv_addr(3))
                a(f"s_and_b32 s50, s{sA}, 0x7ffff")
                a(mf32(S[0], K, Q0, NEGM))
                a(mf32(S[0], K+4, Q1, S[0]))
                a(rd(K, 5, 0)); a(rd(K+4, 5, 1))
                a("s_nop 9")
            if c >= 1 and "S" not in strip:
                if opt.get("earr", 1) and kt == 3 and c < 14:
                    ex[t][0] = ex[t].get(0, []) + [('WAITVM', ('kv', c + 2), 90)] + ([('WAITVM', 'h')] if t + 1 == getattr(self, "h_arrive", -1) else []) + self.arrive()
                if kt == 0 and c < 15 and (c == 1 or not opt.get("earr", 1)):
                    if c == 1: a(f"s_waitcnt vmcnt({a.vm_total - self.p2mark})")
                    emit(a, [('WAITVM', ('kv', c + 1), 90)])
                    if t == getattr(self, "h_arrive", -1): a.wait_vm_tag('h')
                    emit(a, self.arrive())
                if kt == 1 and c < 15:
                    add(t, 2, [f"ds_read_b32 v125, v{vCNTA}"])
                if kt == 2 and c < 15:
                    w0, w1 = self.cnt_wait(125)
                    ex[t][3] = w0 + ex[t].get(3, [])
                    ex[t][0] = w1 + ex[t].get(0, [])
                if kt == 0 and c >= 2 and opt.get("cst"): self.stamp(f"c{c}")
            prio = 3 - ((t - opt.get("pph", 2)) % 4) if t >= 4 and "P" not in strip else None
            if opt.get("pm") == 2 and prio is not None: prio = 1 - (t & 1)
            if t % 3 == 0 or t > 56: self.jitter()
            self.tile(t, t in (0, 4), t in (3, 63), t == 0, prio, ex[t], kread=(t + 2 < 64 and t not in (2, 3)))
        a(f"s_setprio {opt.get('endprio', 0)}")
        self.stamp("p2end")
        if opt.get("clk"): self.stamp("rp2end", True)
        if getattr(a, 'accw', None):
            a.accw = None
            for r, nm in ((88, "Ao"), (89, "Aa"), (90, "Akv"), (91, "Acnt")):
                self.stn[nm] = len(self.stn)
                a(f"s_add_u32 s{r}, s{r}, s74")
                a(f"v_writelane_b32 v126, s{r}, {self.stn[nm]}")

    XS, GV, XR, vOFF = 32, 30, 104, 28
    def o_mark(self, st=True):
        a = self.a
        if not st:
            a(f"s_lshl_b32 s5, s{sTH}, 1")
            a(f"s_lshr_b32 s6, s{sW}, 2")
            a("s_add_u32 s5, s5, s6")
            a(f"s_lshl_b32 s6, s{sMB}, 2")
            a("s_add_u32 s5, s5, s6")
            a("s_lshl_b32 s5, s5, 5")
            a(f"s_lshl_b32 s6, s{sGP}, 1")
            a(f"s_add_u32 s6, s6, s{sHH}")
            a("s_add_u32 s5, s5, s6")
            a("s_lshl_b32 s73, s5, 11")
            a(f"s_add_u32 s73, s73, {WS_O:#x}")
            a("s_lshl_b32 s5, s5, 7")
            a(f"s_add_u32 s95, s5, {WS_FO:#x}")
            return
        for i in range(4): a(f"v_mov_b32 v{224+i}, -1")
        a(f"buffer_store_dwordx4 v[224:227], v{vL16}, s[{SWS}:{SWS+3}], s73 offen sc1", tag='sent')
        a(f"buffer_store_dwordx4 v[224:227], v{vL16}, s[{SWS}:{SWS+3}], s73 offen offset:1024 sc1", tag='sent')

    def o_mark2(self):
        a = self.a
        a(f"s_xor_b32 s5, s{sNON}, 1")
        a("v_mov_b32 v30, s5")
        a("v_mov_b32 v31, s88")
        a("v_mov_b32 v4, 0")
        a.wait_vm_tag('sent')
        a("s_mov_b64 exec, 1")
        a(f"buffer_store_dwordx2 v[30:31], v4, s[{SWS}:{SWS+3}], s95 offen sc1")
        a("s_mov_b64 exec, -1")

    def ord_ld(self):
        a = self.a
        a(f"s_lshr_b32 s7, s{sW}, 2")
        a("s_lshl_b32 s5, s7, 4")
        a(f"s_lshl_b32 s6, s{sRT}, 6")
        a("s_add_u32 s5, s5, s6")
        a("s_lshl_b32 s5, s5, 7")
        a(f"s_add_u32 s5, s5, {WS_FO:#x}")
        a("v_and_b32 v4, 3, v0")
        a("v_lshlrev_b32 v4, 9, v4")
        a(f"buffer_load_dwordx2 v[30:31], v4, s[{SWS}:{SWS+3}], s5 offen sc1")
    def ord_key(self):
        a = self.a
        a(f"s_xor_b32 s5, s{sNON}, 1")
        a("v_subrev_u32 v31, s88, v31")
        a("v_add_u32 v31, 0x100000, v31")
        a("v_cmp_eq_u32 vcc, s5, v30")
        a("v_min_u32 v31, 0x1fffff, v31")
        a("v_and_b32 v4, 3, v0")
        a("v_cndmask_b32 v31, -1, v31, vcc")
        a("v_lshl_or_b32 v31, v31, 2, v4")
    def ord_parts(self):
        cs = lambda x, y: [f"s_min_u32 s5, s{x}, s{y}", f"s_max_u32 s{y}, s{x}, s{y}", f"s_mov_b32 s{x}, s5"]
        pk = lambda q_: [f"s_and_b32 s5, s{88+q_}, 3", f"s_lshl_b32 s5, s5, {2*q_}", "s_or_b32 s85, s85, s5"]
        return [[f"v_readlane_b32 s{88+q_}, v31, {q_}" for q_ in range(4)],
                cs(88, 89) + cs(90, 91), cs(88, 90) + cs(89, 91), cs(89, 90) + ["s_and_b32 s85, s88, 3"] + pk(1),
                pk(2) + pk(3),
                [f"s_lshl_b32 s5, s{sW}, 2", f"s_add_u32 s5, s5, {SCR_CNT + 48}", "v_mov_b32 v4, s5", "v_mov_b32 v5, s85",
                 "ds_write_b32 v4, v5"]]

    OREG = [64*KB, 128*KB, 0, 32*KB]
    def fl_ld(self, r=29):
        self.a(f"buffer_load_dword v{r}, v120, s[{SWS}:{SWS+3}], s31 offen sc1")
    def o_setup(self, late=True):
        a = self.a
        if late:
            a("v_bfe_u32 v4, v0, 2, 1")
            a("v_and_b32 v5, 3, v0")
            a("v_lshlrev_b32 v4, 12, v4")
            a("v_lshl_add_u32 v120, v5, 9, v4")
            self.fl_ld()
            return
        a(f"s_lshr_b32 s7, s{sW}, 2")
        a(f"s_and_b32 s6, s{sW}, 3")
        a("s_lshl_b32 s5, s7, 4")
        a("s_add_u32 s5, s5, s6")
        a(f"s_lshl_b32 s31, s{sRT}, 6")
        a("s_add_u32 s31, s31, s5")
        a("s_lshl_b32 s30, s31, 11")
        a(f"s_add_u32 s30, s30, {WS_O:#x}")
        a("s_lshl_b32 s31, s31, 7")
        a(f"s_add_u32 s31, s31, {WS_FO:#x}")
        a("s_lshl_b32 s84, s7, 14")
        a("s_lshl_b32 s5, s6, 11")
        a("s_add_u32 s84, s84, s5")
    def o_spec(self):
        a = self.a
        a("v_or_b32 v29, 1, v29")
        a(f"s_or_b32 s5, s{sNON}, 1")
        a("v_cmp_ne_u32 s[80:81], s5, v29")
    def gmask(self, pos):
        self.a(f"s_bfe_u32 s5, s85, {0x20000 + 2*pos:#x}")
        self.a("s_lshl_b32 s88, 0x11, s5")
    def g_try(self, pos, inline=False):
        a = self.a
        self.gmask(pos)
        a(f"v_cmp_ne_u32 vcc, s{sNON}, v125")
        a(f"s_lshr_b32 s6, s90, {pos}")
        a("s_andn2_b32 s6, 1, s6")
        a("s_and_b32 s5, vcc_lo, s88")
        a("s_or_b32 s5, s5, s6")
        def go():
            a(f"s_bitset0_b32 s90, {pos}")
            for g in self.o_dma(pos): emit(a, g)
        if inline:
            l = self.label("gt")
            a(f"s_cbranch_scc1 {l}")
            q = list(a.vm_q); go(); a.vm_q = q
            a(f"{l}:")
        else:
            self.ool(["s_cbranch_scc0"], go)
    def o_dma(self, pos, other=False):
        so, sg, sl = (91, 90, 89) if other else (85, 30, 84)
        pre = [f"s_bfe_u32 s5, s{so}, {0x20000 + 2*pos:#x}", "s_lshl_b32 s5, s5, 13", f"s_add_u32 s{sB}, s{sg}, s5",
               f"s_add_u32 s{sA}, s{sB}, 65536"]
        G = []
        for r in range(2):
            for st in range(2):
                g = pre if (r == 0 and st == 0) else []
                g = g + [f"s_add_u32 m0, s{sl}, {self.OREG[pos] + r*8192}", "s_nop 0",
                         (f"buffer_load_dwordx4 v{vL16}, s[{SWS}:{SWS+3}], s{sA if r else sB} offen offset:{st*1024} sc1 lds", ('o', pos))]
                G.append(g)
        return G
    def xg_addr(self):
        a = self.a
        a("v_and_b32 v4, 31, v0")
        a("v_lshlrev_b32 v4, 11, v4")
        a("v_add_u32 v4, s49, v4")
        a("v_lshrrev_b32 v29, 8, v4")
        a(f"s_mov_b32 s5, {WS_G:#x}")
        a(f"buffer_load_dwordx2 v[{self.GV}:{self.GV+1}], v29, s[{SWS}:{SWS+3}], s5 offen sc1")
        a("v_lshrrev_b32 v5, 5, v0")
        a("v_lshl_add_u32 v4, v5, 3, v4")
        a(f"s_lshl_b32 s6, s{sCT}, 8")
        a(f"s_and_b32 s7, s{sW}, 3")
        a("s_lshl_b32 s7, s7, 6")
        a("s_add_u32 s6, s6, s7")
        a(f"v_add_u32 v{self.vOFF}, s6, v4")
    def xg_load(self):
        for j in range(4):
            self.a(f"buffer_load_dwordx2 v[{self.XR+2*j}:{self.XR+2*j+1}], v{self.vOFF}, s[{SX}:{SX+3}], 0 offen offset:{16*j}")

    YS = 120*KB
    def y_ld(self, T):
        a = self.a
        a(f"s_lshr_b32 s6, s{sW}, 2")
        a("s_lshl_b32 s6, s6, 18")
        a(f"s_lshl_b32 s5, s{sCT}, 10")
        a("s_add_u32 s6, s6, s5")
        a(f"s_and_b32 s5, s{sW}, 3")
        a("s_lshl_b32 s5, s5, 8")
        a("s_add_u32 s6, s6, s5")
        a(f"s_add_u32 s6, s6, {WS_YP:#x}")
        for i in range(8):
            a(f"buffer_load_dwordx4 v[{T+4*i}:{T+4*i+3}], v9, s[{SWS}:{SWS+3}], s6 offen sc1")
            if i < 7: a("s_add_u32 s6, s6, 32768")
    def y_issue(self, T):
        a = self.a
        a("v_and_b32 v8, 15, v0")
        a("v_lshrrev_b32 v9, 4, v0")
        a("v_lshlrev_b32 v9, 13, v9")
        a("v_lshl_add_u32 v9, v8, 4, v9")
        self.y_ld(T)
        key_to_r(a, sKEY, 6, 7)
        a("v_mov_b32 v20, s6")
        sigmoid(a, 20)
        round_bf16(a, 20)
    def y_gather(self, T):
        a = self.a
        l = self.label("yok")
        a("s_waitcnt vmcnt(0)")
        self.tagchk(T, 16, 21, 22)
        a(f"s_cbranch_scc1 {l}")
        self.spin(lambda: self.y_ld(T), lambda: self.tagchk(T, 16, 21, 22), 7, sleep=6)
        a(f"{l}:")
        for i in range(1, 8):
            a(f"v_add_f32 v{T}, v{T}, v{T+4*i}")
            a(f"v_add_f32 v{T+2}, v{T+2}, v{T+4*i+2}")
        for op in ("v_permlane16_swap_b32", "v_permlane32_swap_b32"):
            a(f"v_mov_b32 v{T+1}, v{T}")
            a(f"v_mov_b32 v{T+3}, v{T+2}")
            a("s_nop 1")
            a(f"{op} v{T}, v{T+1}")
            a(f"{op} v{T+2}, v{T+3}")
            a(f"v_add_f32 v{T}, v{T}, v{T+1}")
            a(f"v_add_f32 v{T+2}, v{T+2}, v{T+3}")
        a(f"v_mov_b32 v{T+1}, v{T+2}")
        a(f"s_lshl_b32 s6, s{sW}, 7")
        a(f"s_add_u32 s6, s6, {self.YS}")
        a("v_lshl_add_u32 v9, v8, 3, s6")
        a(f"ds_write_b64 v9, v[{T}:{T+1}]")
        a("s_waitcnt lgkmcnt(0)")

    def y_apply(self, part):
        a = self.a
        T, XS, GV = WOF, self.XS, self.GV
        a(f"s_and_b32 s6, s{sW}, 3")
        a("s_lshl_b32 s6, s6, 7")
        a(f"s_add_u32 s6, s6, {self.YS}")
        a("v_and_b32 v8, 31, v0")
        if part == 0:
            a("v_lshl_add_u32 v9, v8, 2, s6")
            a("ds_read_b32 v21, v9")
            a("ds_read_b32 v22, v9 offset:512")
            a("s_waitcnt lgkmcnt(0)")
            a("v_add_f32 v21, v21, v22")
            round_bf16(a, 21)
            a("v_mul_f32 v21, v21, v20")
            round_bf16(a, 21)
            a("ds_write_b32 v9, v21 offset:1024")
            return
        a("v_lshrrev_b32 v9, 5, v0")
        a("v_lshl_add_u32 v9, v9, 4, s6")
        for j in range(4):
            a(f"ds_read_b128 v[{T+4*j}:{T+4*j+3}], v9 offset:{1024 + 32*j}")
        a(f"s_and_b32 s7, s{sIDX}, 31")
        a("v_cmp_eq_u32 vcc, s7, v8")
        a("s_waitcnt lgkmcnt(0)")
        a("s_and_saveexec_b64 s[6:7], vcc")
        for i in range(16):
            a(f"v_fmac_f32 v{XS+i}, v{GV+1}, v{T+i}")
        a("s_mov_b64 exec, s[6:7]")

    def phase3(self):
        a = self.a
        XS, GV, XR, vOFF = self.XS, self.GV, self.XR, self.vOFF
        ACC, OF = [48, 64], 80
        for _ in range(self.opt.get("odp", 0)): emit(a, self.od_late.pop(0))
        a(f"s_mov_b32 s4, {LTHR:#x}")
        a("s_nop 9")
        a(f"v_add_f32 v{L}, v{L}, v{L+1}")
        a(f"v_cmp_nlt_f32 vcc, v{L}, s4")
        def fb():
            a(f"s_lshl_b32 s6, s{sHH}, 14")
            a(f"s_add_u32 s{sA}, s{sKVB}, s6")
            k_attn.sel_setup(a, 4)
            k_attn.fallback(a, "L", sA, SWS, vL16)
        a("s_nop 1")
        self.ool(["s_cmp_lg_u64 vcc, 0", "s_cbranch_scc1"], fb)
        a("L_fin:")
        self.jitter(100)
        if self.opt.get("ff", 0):
            a(f"s_and_b32 s5, s{sW}, 3")
            a("s_lshl_b32 s5, s5, 2")
            a(f"s_add_u32 s5, s5, {SCR_IDX + 128}")
            a("v_mov_b32 v8, s5")
            a("s_mov_b64 exec, 1")
            a(f"ds_add_rtn_u32 v9, v8, v{vONE}")
            a("s_mov_b64 exec, -1")
        a(f"v_rcp_f32 v4, v{L}")
        a("s_nop 0")
        for hf in range(2):
            for i in range(8*hf, 8*hf + 8):
                a(f"v_mul_f32 v{O+i}, v{O+i}, v4")
            for i in range(4*hf, 4*hf + 4):
                a(f"v_cvt_pk_bf16_f32 v{P+i}, v{O+2*i}, v{O+2*i+1}")
            a(f"buffer_store_dwordx4 v[{P+4*hf}:{P+4*hf+3}], v{vL16}, s[{SWS}:{SWS+3}], s73 offen offset:{1024*hf} sc1", tag='ost')
        a("v_mov_b32 v4, 0")
        a(f"v_mov_b32 v5, s{sNON}")
        if self.opt.get("oack"): a.wait_vm_tag('ost')
        a("s_mov_b64 exec, 1")
        a(f"buffer_store_dword v5, v4, s[{SWS}:{SWS+3}], s95 offen sc1")
        a("s_mov_b64 exec, -1")
        self.stamp("opub")
        if self.opt.get("gate", 0):
            def rest():
                def chk():
                    a(f"v_cmp_ne_u32 vcc, s{sNON}, v125")
                    a("s_nop 1")
                    a("s_and_b32 s5, vcc_lo, s88")
                    a("s_cmp_eq_u32 s5, 0")
                self.gmask(0)
                self.spin(lambda: self.fl_ld(125), chk, 7, sleep=1)
                for g in self.o_dma(0): emit(a, g)
                a("s_mov_b32 s91, s90")
                self.g_try(1, inline=True)
                l = self.label("gw")
                a("s_waitcnt vmcnt(4)")
                a("s_cmp_lg_u32 s91, s90")
                a(f"s_cbranch_scc1 {l}")
                a("s_waitcnt vmcnt(0)")
                a(f"{l}:")
            self.ool(["s_bitcmp1_b32 s90, 0", "s_cbranch_scc1"], rest)
            self.g1mark = a.vm_total
        elif self.opt.get("gate2", 0):
            def chk():
                a(f"v_cmp_ne_u32 vcc, s{sNON}, v125")
                a("s_nop 1")
                a("s_and_b32 s5, vcc_lo, s88")
                a("s_cmp_eq_u32 s5, 0")
            self.fl_ld(125)
            self.gmask(0); chk()
            self.ool(["s_cbranch_scc0"], lambda: self.spin(lambda: self.fl_ld(125), chk, 7, sleep=self.opt["gate2"]))
            for g in self.o_dma(0): emit(a, g)
            self.gmask(1); chk()
            l = self.label("no1")
            a("s_cselect_b32 s76, 0, 1")
            a(f"s_cbranch_scc0 {l}")
            q = list(a.vm_q); tot = a.vm_total
            for g in self.o_dma(1): emit(a, g)
            a(f"{l}:")
            a.vm_q = q; a.vm_total = tot; self.g1mark = tot
        elif self.opt.get("ff", 0):
            pass
        else:
            if self.opt.get("odw", 1): a("s_waitcnt vmcnt(0)")
            if self.opt.get("odsl"): a(f"s_sleep {self.opt['odsl']}")
            if self.opt.get("wofirst"):
                for i in range(self.opt.get("np2", 24), 32): emit(a, self.wo_ld(i))
            L_ = getattr(self, "od_late", [])
            for n_, g in enumerate(L_):
                if n_ == 4 and self.opt.get("p1w"): a("s_waitcnt vmcnt(0)")
                emit(a, g)
        M = "M" not in self.opt.get("strip", "") and "Y" not in self.opt.get("strip", "")
        if self.opt.get("ff", 0):
            a("v_readfirstlane_b32 s76, v9")
            def both():
                for oth in (False, True):
                    for g in self.o_dma(0, oth): emit(a, g)
            a("s_nop 3")
            self.ool(["s_cmp_eq_u32 s76, 0", "s_cbranch_scc1"], both)
            for g in self.o_dma(1): emit(a, g)
        a(f"s_and_b32 s5, s84, 0x4000")
        a("s_lshr_b32 s6, s5, 1")
        a("s_add_u32 s5, s5, s6")
        a(f"v_add_u32 v3, s5, v{vL16}")
        a("v_xor_b32 v2, 8192, v3")
        for k_, off in ((0, 64*KB), (1, 128*KB)):
            a(f"v_add_u32 v{6+4*k_}, {off}, v2")
            a(f"v_add_u32 v{7+4*k_}, {off}, v3")
        a(f"v_add_u32 v12, s84, v{vL16}")
        a(f"v_add_u32 v13, {64*KB}, v12")
        a(f"v_add_u32 v14, {128*KB}, v12")
        self.stamp("p3go")
        if self.timing is True: a("v_writelane_b32 v126, s85, 63")
        def vchk(pos, other=False):
            v, o = {0: (12, 0), 32*KB: (12, 32*KB), 64*KB: (13, 0), 128*KB: (14, 0)}[self.OREG[pos]]
            if other: v = 23
            for k_ in range(4):
                a(f"ds_read_b32 v{16+k_}, v{v} offset:{o + (k_ >> 1)*8192 + (k_ & 1)*1024}")
        def vchk2():
            a("v_max3_u32 v16, v16, v17, v18")
            a("v_max_u32 v16, v16, v19")
            a("v_cmp_eq_u32 vcc, -1, v16")
        def refetch(pos, other=False):
            def ld():
                for g in self.o_dma(pos, other): emit(a, g)
            def chk2():
                vchk(pos, other); a("s_waitcnt lgkmcnt(0)"); vchk2(); a("s_nop 1")
                a("s_cmp_eq_u64 vcc, 0")
            def body():
                lok = self.label("rfok")
                if self.opt.get("bst"): self.stamp(f"rf{pos}")
                if self.opt.get("retry1", 1) and not self.opt.get("gate", 0) and not self.opt.get("gate2", 0):
                    ld(); self.fl_ld(15)
                    a("s_waitcnt vmcnt(0)")
                    chk2()
                    a("s_or_b64 vcc, vcc, s[80:81]")
                    a(f"s_cbranch_scc0 {lok}")
                if self.opt.get("bst"): self.stamp(f"rg{pos}")
                a(f"s_bfe_u32 s5, s{91 if other else 85}, {0x20000 + 2*pos:#x}")
                a(f"s_lshl_b32 s88, {0x1100 if other else 0x11:#x}, s5")
                def chk():
                    a(f"v_cmp_ne_u32 vcc, s{sNON}, v15")
                    a("s_nop 1")
                    a("s_and_b32 s5, vcc_lo, s88")
                    a("s_cmp_eq_u32 s5, 0")
                self.spin(lambda: self.fl_ld(15), chk, 7, sleep=self.opt.get("fsl", 6))
                if self.opt.get("bst"): self.stamp(f"rs{pos}")
                self.spin(ld, chk2, 7, sleep=2)
                a(f"{lok}:")
                if self.opt.get("bst"): self.stamp(f"re{pos}")
            return body
        def validate(pos, part):
            if part == 0:
                if pos == 0 and self.opt.get("gate", 0): a(f"s_waitcnt vmcnt({a.vm_total - self.gmark})")
                if pos == 0 and self.opt.get("gate2", 0):
                    self.ool(["s_cmp_lg_u32 s76, 0", "s_cbranch_scc1"], lambda: a("s_waitcnt vmcnt(0)"))
                    a.lines.append("    s_waitcnt vmcnt(4)")
                    a.vm_q = []; vchk(pos); return
                if pos == 1 and (self.opt.get("gate", 0) or self.opt.get("gate2", 0)): a(f"s_waitcnt vmcnt({a.vm_total - self.g1mark})")
                a.wait_vm_tag(('o', pos)); vchk(pos)
            else:
                vchk2()
                a("s_nop 1")
                if pos == 1 and self.opt.get("gate2", 0): a("s_or_b32 vcc_lo, vcc_lo, s76")
                if pos == 1 and self.opt.get("gate", 0):
                    a("s_and_b32 s5, s90, 2")
                    a("s_or_b32 vcc_lo, vcc_lo, s5")
                self.ool(["s_or_b64 vcc, vcc, s[80:81]", "s_cbranch_scc1"], refetch(pos))
        NB, PRE = 6, 5
        LOC = [(pos, p, st, r) for pos in range(3) for p in range(4) for st in range(2) for r in range(2)]
        LOC += [(3, p, st, r) for r in range(2) for p in range(4) for st in range(2)]
        def rdo(i):
            pos, p, st, r = LOC[i]
            v, o = {0: (2, 0), 32*KB: (2, 32*KB), 64*KB: (6, 0), 128*KB: (10, 0)}[self.OREG[pos]]
            return f"ds_read_b128 v[{OF + (i % NB)*4}:{OF + (i % NB)*4 + 3}], v{v + r} offset:{o + p*2048 + st*1024}"
        def gslow():
            a(f"s_mov_b32 s5, {WS_G:#x}")
            def ld(): a(f"buffer_load_dwordx2 v[{GV}:{GV+1}], v29, s[{SWS}:{SWS+3}], s5 offen sc1")
            def chk():
                a(f"v_cmp_ne_u32 vcc, s{sNON}, v{GV+1}")
                a("s_nop 1")
                a("s_cmp_eq_u64 vcc, 0")
            self.spin(ld, chk, 7)
        def xs(part):
            if part == 0:
                a(f"v_cmp_ne_u32 vcc, s{sNON}, v{GV+1}")
                a("s_nop 1")
                self.ool(["s_cmp_lg_u64 vcc, 0", "s_cbranch_scc1"], gslow)
                a(f"v_sub_f32 v{GV+1}, 1.0, v{GV}")
                round_bf16(a, GV+1)
            else:
                for j in (2*part - 2, 2*part - 1):
                    a(f"v_lshlrev_b32 v{XS+2*j}, 16, v{XR+j}")
                    a(f"v_and_b32 v{XS+2*j+1}, 0xffff0000, v{XR+j}")
                    a(f"v_mul_f32 v{XS+2*j}, v{XS+2*j}, v{GV+1}")
                    a(f"v_mul_f32 v{XS+2*j+1}, v{XS+2*j+1}, v{GV+1}")
        OWN = [f"s_lshr_b32 s7, s{sIDX}, 6", f"s_cmp_eq_u32 s7, s{sRT}", "s_cbranch_scc1"]
        if M: self.ool(OWN, lambda: (self.y_issue(OF), self.y_gather(OF)))
        if self.opt.get("spec2", 0): a(f"s_waitcnt vmcnt({a.vm_total - self.spmark})")
        if self.opt.get("ff", 0):
            def first():
                a("v_xor_b32 v23, 0x4000, v13")
                a("s_waitcnt vmcnt(8)")
                for oth in (False, True):
                    if oth: a("s_waitcnt vmcnt(4)")
                    vchk(0, oth); a("s_waitcnt lgkmcnt(0)"); vchk2(); a("s_nop 1")
                    l = self.label("ffok")
                    a("s_or_b64 vcc, vcc, s[80:81]")
                    a(f"s_cbranch_scc0 {l}")
                    refetch(0, oth)()
                    a(f"{l}:")
            self.ool(["s_cmp_eq_u32 s76, 0", "s_cbranch_scc1"], first)
        else:
            validate(0, 0); validate(0, 1)
        if self.opt.get("endprio"): a("s_setprio 0")
        if self.opt.get("bst"): self.stamp("preB1")
        a("s_barrier")
        self.stamp("oseen")
        for i in range(PRE): a(rdo(i))
        OWN2 = [f"s_lshl_b32 s6, s{sRT}, 1", f"s_lshr_b32 s7, s{sW}, 2", "s_add_u32 s6, s6, s7",
                f"s_lshr_b32 s7, s{sIDX}, 5", "s_cmp_eq_u32 s6, s7", "s_cbranch_scc1"]
        NP2 = self.opt.get("np2", 24)
        late = [] if self.opt.get("wofirst") else list(range(NP2, 32))
        XB_ = 112
        for i, (pos, p, st, r) in enumerate(LOC):
            k_ = i % 16
            if self.opt.get("p3skip") and pos in self.opt["p3skip"] and k_ >= 2:
                pass
            elif self.opt.get("p3m16"):
                o_ = 8 * st
                a(mf16(ACC[r] + o_, WOF + (4*pos + p)*8, OF + (i % NB)*4, ACC[r] + o_))
                a(mf16(ACC[r] + o_ + 4, WOF + (4*pos + p)*8 + 4, OF + (i % NB)*4, ACC[r] + o_ + 4))
            else:
                a(mf32(ACC[r], WOF + (4*pos + p)*8 + st*4, OF + (i % NB)*4, "0" if i < 2 else ACC[r]))
            if k_ in (1, 8, 13): self.jitter(20)
            SPC, OFS = self.opt.get("spc", 1), self.opt.get("p3ofs", 11)
            if pos == 0 and k_ % SPC == 0 and k_ < 4*SPC: emit(a, self.o_dma(2)[k_ // SPC])
            if pos == 1 and k_ >= OFS and (k_ - OFS) % SPC == 0 and k_ - OFS < 4*SPC: emit(a, self.o_dma(3)[(k_ - OFS) // SPC])
            if pos == 1 and k_ == 11:
                a("v_bfe_u32 v4, v0, 4, 1")
                a("v_lshlrev_b32 v4, 13, v4")
                a("v_and_b32 v5, 15, v0")
                a("v_lshl_add_u32 v4, v5, 6, v4")
                a("v_lshrrev_b32 v5, 5, v0")
                a("v_lshl_add_u32 v4, v5, 3, v4")
                a(f"s_add_u32 s5, s77, {stg_slot(0)}")
                a("v_add_u32 v4, s5, v4")
                a.wait_vm_tag('xd')
                for j in range(4): a(f"ds_read_b64 v[{XR+2*j}:{XR+2*j+1}], v4 offset:{16*j}")
            if ((pos == 0 and (k_ >= 12 or (NP2 < 24 and k_ % 3 == 1))) or (pos == 1 and k_ % 3 == 1 and k_ < 12)) and late and "O" not in self.opt.get("strip", ""): emit(a, self.wo_ld(late.pop(0)))
            if pos == 2 and k_ < 5: xs(k_)
            if pos < 3:
                if k_ == self.opt.get("vk", 6): validate(pos + 1, 0)
                if k_ == 9: validate(pos + 1, 1)
                if k_ == 10: a("s_barrier")
            if self.opt.get("p3prio") and k_ == 0: a(f"s_setprio {[3,2,1,0][pos]}")
            if M and pos == 0 and k_ == 11: self.ool(OWN2, lambda: self.y_apply(0))
            if M and pos == 2 and k_ == 5: self.ool(OWN2, lambda: self.y_apply(1))
            if pos == 3 and k_ == 3:
                a(f"s_add_u32 s6, s{sW4K}, {96*KB}")
                a(f"v_add_u32 v4, s6, v{vL16}")
                a(f"s_xor_b32 s7, s6, {4 << 12}")
                a(f"v_add_u32 v5, s7, v{vL16}")
                a("v_lshrrev_b32 v8, 5, v0")
                a(f"v_lshl_add_u32 v8, v8, 3, v{vOFF}")
            if i + PRE < 64: a(rdo(i + PRE))
            if self.opt.get("bst") and k_ in (5, 10, 15): self.stamp(f"b{pos}_{k_}")
            if pos == 3 and k_ == 12:
                a("s_nop 6")
                for j in range(4):
                    a(f"ds_write_b128 v4, v[{ACC[0]+4*j}:{ACC[0]+4*j+3}] offset:{1024*j}")
        assert not late or "O" in self.opt.get("strip", "")
        self.stamp("p3mm")
        a("s_waitcnt lgkmcnt(0)")
        a("s_barrier")
        if self.opt.get("bst"): self.stamp("xbar")
        for j in range(4):
            a(f"ds_read_b128 v[{WOF+4*j}:{WOF+4*j+3}], v5 offset:{1024*j}")
        a("s_nop 5")
        for i in range(16):
            a(f"v_fmac_f32 v{XS+i}, v{ACC[1]+i}, v{GV}")
        b = OF
        for i in range(8):
            a(f"v_fmac_f32 v{XS+2*i}, v{WOF+2*i}, v{GV}")
            a(f"v_fmac_f32 v{XS+2*i+1}, v{WOF+2*i+1}, v{GV}")
            a(f"v_cvt_pk_bf16_f32 v{b+i}, v{XS+2*i}, v{XS+2*i+1}")
            if i in (3, 7):
                k_ = i // 4
                a("s_nop 1")
                a(f"v_permlane32_swap_b32 v{b+4*k_}, v{b+4*k_+2}")
                a(f"v_permlane32_swap_b32 v{b+4*k_+1}, v{b+4*k_+3}")
                a(f"buffer_store_dwordx4 v[{b+4*k_}:{b+4*k_+3}], v8, s[{SOUT}:{SOUT+3}], 0 offen offset:{32*k_} {self.opt.get('outfl', '')}")
        if self.opt.get("bst"): self.stamp("sti")
        if self.timing:
            a("s_waitcnt vmcnt(0)")
            self.stamp("end"); self.stamp("rt1", True)
            a("v_writelane_b32 v126, s66, 0")
            a("v_writelane_b32 v126, s74, 1")
            a("s_lshl_b32 s4, s2, 11")
            a(f"s_lshl_b32 s5, s{sW}, 8")
            a("s_add_u32 s4, s4, s5")
            a(f"s_add_u32 s4, s4, {WS_TS:#x}")
            a("v_lshlrev_b32 v5, 2, v0")
            a(f"buffer_store_dword v126, v5, s[{SWS}:{SWS+3}], s4 offen")
        if self.opt.get("diag_dbg"):
            a("s_waitcnt vmcnt(0)")
            a("s_memrealtime s[100:101]")
            a(f"s_load_dwordx2 s[4:5], s[0:1], {KA_DBG}")
            a("s_waitcnt lgkmcnt(0)")
            a("s_and_b32 s6, s2, 7")
            a("s_lshl_b32 s6, s6, 2")
            a("v_mov_b32 v4, s66")
            a("v_mov_b32 v5, s100")
            a("s_not_b32 s7, s66")
            a("v_mov_b32 v6, s7")
            a("v_mov_b32 v7, s6")
            a("v_mov_b32 v8, 0")
            a("s_mov_b64 exec, 1")
            a("global_atomic_umax v7, v4, s[4:5]")
            a("global_atomic_umax v8, v5, s[4:5] offset:32")
            a("global_atomic_umax v8, v6, s[4:5] offset:36")
            a("s_mov_b64 exec, -1")
        if self.opt.get("diag_len"):
            a("s_waitcnt vmcnt(0)")
            if self.opt.get("diag_wb"):
                a("buffer_wbl2 sc1")
                a("s_waitcnt vmcnt(0)")
            a("L_dl:")
            a("s_memrealtime s[100:101]")
            a("s_waitcnt lgkmcnt(0)")
            a("s_sub_u32 s100, s100, s66")
            a(f"s_cmp_lt_u32 s100, {self.opt['diag_len']}")
            a("s_cbranch_scc1 L_dl")
        a("L_exit:")
        a("s_endpgm")
        a.lines += self.tail
        a("L_end:")
        a("s_endpgm")

    def build(self):
        self.prologue()
        self.producer()
        self.consumer16() if self.opt.get('m16', 1) else self.consumer()
        self.phase2()
        self.phase3()
        return self.a

def make(path, timing=False, opt=None, lint=True):
    g = Gen(timing, opt)
    a = g.build()
    if lint:
        for p in a.lint("fused"): print(p)
    hdr = open("hdr.txt").read()
    hdr += open("desc.txt").read()
    txt = hdr + "; @launch grid=(256,1,1) block=(512,1,1) lds=163840\n.amdgcn_target \"amdgcn-amd-amdhsa--gfx950\"\n.text\n" + a.text() + kd(KN)
    open(path, "w").write(txt)
    import subprocess
    r = subprocess.run(["clang", "-x", "assembler", "-target", "amdgcn-amd-amdhsa", "-mcpu=gfx950", "-c", path, "-o", "chk.o"], capture_output=True, text=True)
    if r.returncode: print(r.stderr[:1500]); raise SystemExit(1)
    return g

if __name__ == "__main__":
    import sys, json
    variants = json.loads(sys.argv[1]) if len(sys.argv) > 1 else {"f0": {}}
    for nm, opt in variants.items():
        g = make(f"gen/{nm}.s", opt=opt)
        make(f"gen/{nm}l.s", timing="light", opt=opt, lint=False)
        g = make(f"gen/{nm}t.s", timing=True, opt=opt, lint=False)
        print(nm, g.wsteps, g.wlate)
        json.dump(list(g.stn.keys()), open(f"gen/{nm}t.s.json", "w"))
```
